```python
import torch

def _softmax(x, axis=-1):
    return torch.softmax(x, dim=axis)
def _gelu(x):
    return torch.nn.functional.gelu(x, approximate="tanh")
def _silu(x):
    return torch.nn.functional.silu(x)
def _sigmoid(x):
    return torch.sigmoid(x)
def _layernorm(x, axis=-1, eps=1e-5):
    m = x.mean(dim=axis, keepdim=True)
    v = x.var(dim=axis, keepdim=True, unbiased=False)
    return (x - m) / torch.sqrt(v + eps)
def _scatter_add(tgt, idx, src, axis=0):
    return tgt.clone().index_add_(axis, idx, src)
def _segment_sum(src, seg, n):
    out = torch.zeros((n,) + src.shape[1:], dtype=src.dtype)
    return out.index_add_(0, seg, src)
def _pad(x, pw):
    flat = tuple(v for pair in reversed(pw) for v in pair)
    return torch.nn.functional.pad(x, flat)

kernel_name = 'interleave_layers__softmax_full_mha__ssm_conv_h3__prompt'

def setup_inputs():

    _w = (lambda a: (lambda t: t.to(torch.bfloat16) if t.is_floating_point() else t)(torch.as_tensor(a)))
    def _A_setup():
        B, S, D = 1, 2048, 576
        return {
            "x": _w((lambda *s: torch.randn(*s, dtype=torch.bfloat16) * 0.05)(B, S, D)),
            "wqkv": _w((lambda *s: torch.randn(*s, dtype=torch.bfloat16) * 0.05)(D, 3 * D)),
            "wo": _w((lambda *s: torch.randn(*s, dtype=torch.bfloat16) * 0.05)(D, D)),
        }
    _A_in = _A_setup()

    def _B_setup():
        B, S, D = 1, 2048, 576
        ks = 4
        return {
            "q": _w((lambda *s: torch.randn(*s, dtype=torch.bfloat16) * 0.05)(B, S, D)),
            "k": _w((lambda *s: torch.randn(*s, dtype=torch.bfloat16) * 0.4)(B, S, D)),
            "v": _w((lambda *s: torch.randn(*s, dtype=torch.bfloat16) * 0.4)(B, S, D)),
            "shift_k": _w((lambda *s: torch.randn(*s, dtype=torch.bfloat16) * 0.4)(D, ks) * 0.5),
            "ssm_k": _w((lambda *s: torch.randn(*s, dtype=torch.bfloat16) * 0.8)(D, S) * (1.0 / S ** 0.5)),
            "ssm_D": _w((lambda *s: torch.randn(*s, dtype=torch.bfloat16) * 0.4)(D)),
        }
    _B_in = _B_setup()

    return {
        "A_x": _A_in["x"],
        "A_wqkv": _A_in["wqkv"],
        "A_wo": _A_in["wo"],
        "B_q": _B_in["q"],
        "B_k": _B_in["k"],
        "B_v": _B_in["v"],
        "B_shift_k": _B_in["shift_k"],
        "B_ssm_k": _B_in["ssm_k"],
        "B_ssm_D": _B_in["ssm_D"],
    }

def reference(A_x, A_wqkv, A_wo, B_q, B_k, B_v, B_shift_k, B_ssm_k, B_ssm_D):
    def _A_ref(x, wqkv, wo):
        B, S, D = x.shape
        H = 32; Dh = D // H
        qkv = (lambda x, *d: x.permute(*d))((x @ wqkv).reshape(B, S, 3, H, Dh), 2, 0, 3, 1, 4)
        q, k, v = qkv[0], qkv[1], qkv[2]
        scale = Dh ** -0.5
        scores = torch.einsum("bhqd,bhkd->bhqk", q, k) * scale
        p = _softmax(scores, axis=-1)
        o = torch.einsum("bhqk,bhkd->bhqd", p, v)
        return (lambda x, *d: x.permute(*d))(o, 0, 2, 1, 3).reshape(B, S, D) @ wo

    def _B_ref(q, k, v, shift_k, ssm_k, ssm_D):
        B, S, D = q.shape
        ks = shift_k.shape[-1]
        k_pad = _pad(k, ((0, 0), (ks - 1, 0), (0, 0)))
        k_shift = torch.zeros_like(k)
        for t in range(ks):
            k_shift = k_shift + k_pad[:, t:t + S, :] * shift_k[:, ks - 1 - t][None, None, :]
        kv = k_shift * v
        L = 2 * S
        kv_pad = _pad(kv, ((0, 0), (0, S), (0, 0)))
        kf_pad = _pad(ssm_k, ((0, 0), (0, S)))
        kv_f = (lambda x, axes=(-2,-1): torch.fft.rfft2(x.float(), dim=axes))(kv_pad[:, None, :, :], axes=(1, 2))
        kf_f = (lambda x, axes=(-2,-1): torch.fft.rfft2(x.float(), dim=axes))(kf_pad[:, None, :], axes=(1, 2))
        kf_f = (lambda x, *d: x.permute(*d))(kf_f, 1, 2, 0)
        y_f = kv_f * kf_f[None, :, :, :]
        y = (lambda x, s, axes=(-2,-1): torch.fft.irfft2(x, s=s, dim=axes).to(torch.bfloat16))(y_f, (1, L), axes=(1, 2))[:, 0, :S, :]
        y = y + kv * ssm_D[None, None, :]
        return q * y

    x = A_x
    x = x + _A_ref(_layernorm(x, axis=-1), A_wqkv, A_wo)
    x = x + _B_ref(_layernorm(x, axis=-1), B_k, B_v, B_shift_k, B_ssm_k, B_ssm_D)
    x = x + _A_ref(_layernorm(x, axis=-1), A_wqkv, A_wo)
    x = x + _B_ref(_layernorm(x, axis=-1), B_k, B_v, B_shift_k, B_ssm_k, B_ssm_D)
    return x
```

```python
class Asm:
    def __init__(self):
        self.lines = []
        self.uid = 0
    def __call__(self, s):
        for l in s.strip("\n").split("\n"):
            l = l.strip()
            if not l: continue
            if l.endswith(":") or l.startswith(".") or l.startswith(";"):
                self.lines.append(l)
            else:
                self.lines.append("    " + l)
    def label(self, name):
        self.lines.append(name + ":")
    def newlabel(self, base):
        self.uid += 1
        return f"L_{base}_{self.uid}"
    def text(self):
        return "\n".join(self.lines) + "\n"

def vr(base, n=1):
    return f"v{base}" if n == 1 else f"v[{base}:{base+n-1}]"
def ar(base, n=1):
    return f"a{base}" if n == 1 else f"a[{base}:{base+n-1}]"
def sr(base, n=1):
    return f"s{base}" if n == 1 else f"s[{base}:{base+n-1}]"

def kernel_head(a, name):
    a(f".text\n.globl {name}\n.p2align 8\n.type {name},@function\n{name}:")

def kernel_desc(a, name, vgpr, sgpr=102, accum=None, denorm=3):
    if accum is None: accum = (vgpr + 3) // 4 * 4
    a(f""".section .rodata,"a"
.p2align 6
.amdhsa_kernel {name}
.amdhsa_next_free_vgpr {vgpr}
.amdhsa_next_free_sgpr {sgpr}
.amdhsa_accum_offset {accum}
.amdhsa_group_segment_fixed_size 0
.amdhsa_kernarg_size 96
.amdhsa_user_sgpr_count 2
.amdhsa_user_sgpr_kernarg_segment_ptr 1
.amdhsa_system_sgpr_workgroup_id_x 1
.amdhsa_float_denorm_mode_32 {denorm}
.end_amdhsa_kernel
.text""")

def srd(a, d, ptr, nbytes):
    a(f"s_mov_b32 s{d}, s{ptr}")
    a(f"s_and_b32 s{d+1}, s{ptr+1}, 0xffff")
    a(f"s_mov_b32 s{d+2}, {nbytes:#x}")
    a(f"s_mov_b32 s{d+3}, 0x00020000")

PROF_OFF = 0x1700000
class Prof:
    def __init__(self, a, on):
        self.a = a; self.on = on; self.n = 0
    def stamp(self):
        if not self.on: return
        self.a(f"s_memtime s[{70+2*self.n}:{71+2*self.n}]")
        self.n += 1
    def stamp_at(self, i):
        if not self.on: return
        self.a(f"s_memtime s[{70+2*i}:{71+2*i}]")
        self.n = max(self.n, i + 1)
    def dump(self, srd, swg, swave, v=4):
        if not self.on: return
        a = self.a
        a("s_waitcnt lgkmcnt(0)")
        a("s_memrealtime s[68:69]\ns_waitcnt lgkmcnt(0)")
        for i in range(7):
            if i == 0: a(f"v_mov_b32 v{v}, s70")
            elif i < self.n:
                a(f"s_sub_u32 s66, s{70+2*i}, s70\nv_mov_b32 v{v+i}, s66")
            else: a(f"v_mov_b32 v{v+i}, 0")
        a(f"v_mov_b32 v{v+7}, s68")
        a(f"""
        s_lshl_b32 s66, s{swg}, 3
        s_add_u32 s66, s66, s{swave}
        s_lshl_b32 s66, s66, 5
        s_add_u32 s66, s66, {PROF_OFF}
        v_mov_b32 v{v+8}, 0
        s_mov_b32 exec_hi, 0
        s_mov_b32 exec_lo, 1
        buffer_store_dwordx4 v[{v}:{v+3}], v{v+8}, s[{srd}:{srd+3}], s66 offen
        buffer_store_dwordx4 v[{v+4}:{v+7}], v{v+8}, s[{srd}:{srd+3}], s66 offen offset:16
        s_waitcnt vmcnt(0)
        s_mov_b64 exec, -1
        """)
```

```python
import sys
sys.path.insert(0, "work")
from asmlib import *
from layout import *
import k_prep, k_conv, k_q, k_attn, k_c

MAIN = "interleave_layers__softmax_full_mha__ssm_conv_h3__prompt_kernel"
HEADER = open("interleave_layers__softmax_full_mha__ssm_conv_h3__prompt.s.ref").read().split("; Override launch geometry")[0]

def build(prof=False, extra_empty=0, opts=None):
    opts = opts or {}
    launches = []
    a = Asm()
    a('.amdgcn_target "amdgcn-amd-amdhsa--gfx950"')
    k_prep.emit_prep(a, MAIN)
    launches.append((MAIN, k_prep.NPREP, 256, k_prep.PREP_LDS))
    n = "qkv1_conv_kernel"
    kernel_head(a, n)
    a(f"""
    s_cmp_ge_u32 s2, {k_q.NQWG + k_conv.NCONV}
    s_cbranch_scc1 L_{n}_exit
    s_cmp_ge_u32 s2, {k_q.NQWG}
    s_cbranch_scc1 L_{n}_conv
    """)
    k_q.emit_q_body(a, n, False, 2, prof=prof)
    a(f"L_{n}_exit:\ns_endpgm\nL_{n}_conv:\ns_sub_u32 s3, s2, {k_q.NQWG}")
    k_conv.emit_conv_body(a, n + "c", 3)
    a("s_endpgm")
    kernel_desc(a, n, 124)
    launches.append((n, k_q.NQWG + k_conv.NCONV, 512, k_q.Q_LDS))
    k_attn.emit_attn(a, "attn_kernel", prof=False)
    launches.append(("attn_kernel", 256, 512, k_attn.ATT_LDS))
    for layer, n in ((0, "proj1_kernel"), (1, "proj2_kernel")):
        kernel_head(a, n)
        a(f"s_cmp_ge_u32 s2, {k_c.NCWG}\ns_cbranch_scc1 L_{n}_exit")
        k_c.emit_c_body(a, n, layer, 2, prof=prof)
        a(f"L_{n}_exit:\ns_endpgm")
        kernel_desc(a, n, 200)
    n = "qkv2_kernel"
    kernel_head(a, n)
    a(f"s_cmp_ge_u32 s2, {k_q.NQWG}\ns_cbranch_scc1 L_{n}_exit")
    k_q.emit_q_body(a, n, True, 2, prof=prof)
    a(f"L_{n}_exit:\ns_endpgm")
    kernel_desc(a, n, 124)
    launches.append(("proj1_kernel", k_c.NCWG, 512, k_c.C_LDS))
    launches.append(("qkv2_kernel", k_q.NQWG, 512, 98304))
    launches.append(("attn_kernel", 256, 512, k_attn.ATT_LDS))
    launches.append(("proj2_kernel", k_c.NCWG, 512, k_c.C_LDS))
    if extra_empty:
        kernel_head(a, "empty_kernel")
        a("s_endpgm")
        kernel_desc(a, "empty_kernel", 8)
        for i in range(extra_empty): launches.append(("empty_kernel", 256, 64, 0))
    head = HEADER + "; Launch list (one line per launch, in run order):\n"
    for (k, g, b, l) in launches:
        head += f"; @launch kernel={k} grid=({g},1,1) block=({b},1,1) lds={l}\n"
    return head + a.text(), launches

if __name__ == "__main__":
    text, launches = build()
    out = sys.argv[1] if len(sys.argv) > 1 else "interleave_layers__softmax_full_mha__ssm_conv_h3__prompt.s"
    open(out, "w").write(text)
    print("written", out, len(text), "bytes")
```

```python
from asmlib import *
from layout import *

ATT_LDS = 155648

def emit_attn(a, name, prof=False, var=""):
    kernel_head(a, name)
    Lend = f"L_{name}_end"
    Q1 = [4, 8]
    Q2 = [[12, 14], [16, 18]]
    K1, K2, V0, V1 = 20, 24, 28, 32
    P = 36
    O = [44, 60]
    Sb = [76, 92]
    AK1, AK2, AV = 108, 109, 110
    T0, T1, T2, T3, M = 112, 113, 114, 115, 116
    DB = "nodb" not in var
    K1b = [K1, 120] if DB else [K1, K1]
    V0b = [V0, 124] if DB else [V0, V0]
    V1b = [V1, 128] if DB else [V1, V1]
    K2b = [K2, 132]
    VL16 = 3
    AG = "ag" in var
    def fr(base, n):
        amap = {20: 0, 120: 4, 24: 8, 26: 10, 28: 12, 124: 16, 32: 20, 128: 24, 132: 28, 134: 30}
        return ar(amap[base], n) if AG else vr(base, n)
    if prof: a("s_memtime s[40:41]\ns_memrealtime s[50:51]")
    a(f"""
    s_cmp_ge_u32 s2, 256
    s_cbranch_scc1 {Lend}
    s_load_dwordx2 s[12:13], s[0:1], {KA_WS}
    s_lshr_b32 s8, s2, 6
    s_lshl_b32 s8, s8, 3
    s_and_b32 s9, s2, 7
    s_or_b32 s8, s8, s9                 ; head
    s_lshr_b32 s9, s2, 3
    s_and_b32 s9, s9, 7
    v_lshrrev_b32 v1, 6, v0
    v_and_b32 v2, 63, v0                ; lane
    v_readfirstlane_b32 s10, v1         ; wave
    v_lshlrev_b32 v{VL16}, 4, v2
    s_mul_i32 s14, s8, {KV_HEAD}
    s_and_b32 s23, s10, 3               ; qp
    s_lshr_b32 s28, s10, 2              ; kh
    s_lshl_b32 s11, s9, 3
    s_lshl_b32 s15, s23, 1
    s_add_u32 s11, s11, s15
    s_lshl_b32 s15, s10, 10             ; wave*1024
    s_add_u32 s18, s14, s15
    s_lshl_b32 s16, s8, 16
    s_lshl_b32 s17, s11, 10
    s_add_u32 s16, s16, s17
    s_add_u32 s16, s16, {WS_Q1}         ; Q1 offset
    s_lshl_b32 s17, s8, 13
    s_lshl_b32 s19, s11, 7
    s_add_u32 s17, s17, s19
    s_add_u32 s17, s17, {WS_Q2}         ; Q2 offset
    v_lshlrev_b32 v{T0}, 2, v2          ; lane*4
    v_mov_b32 v{Q2[0][0]}, 0
    v_mov_b32 v{Q2[1][0]}, 0
    s_waitcnt lgkmcnt(0)
    """)
    srd(a, 4, 12, WS_BYTES)
    a(f"""
    buffer_load_dwordx4 {vr(Q1[0],4)}, v{VL16}, s[4:7], s16 offen
    buffer_load_dwordx4 {vr(Q1[1],4)}, v{VL16}, s[4:7], s16 offen offset:1024
    s_mov_b32 exec_hi, 0
    buffer_load_dword v{Q2[0][0]}, v{T0}, s[4:7], s17 offen
    buffer_load_dword v{Q2[1][0]}, v{T0}, s[4:7], s17 offen offset:128
    s_mov_b32 exec_hi, -1
    """)
    k1b, k2b, vb = 0, KV_K2 // 1024, KV_V // 1024
    K1R = lambda r: k1b + 8 * r
    VA = lambda r: vb + 8 * r
    VB = lambda r: vb + 38 + 8 * r
    issued = []
    def dma(b):
        a(f"s_add_u32 m0, s15, {b*1024}")
        a(f"s_add_u32 s19, s18, {WS_KV + b*1024}")
        a(f"buffer_load_dwordx4 v{VL16}, s[4:7], s19 offen lds")
        issued.append(b)
    def arrive(blocks):
        last = max(issued.index(b) for b in blocks)
        a(f"s_waitcnt vmcnt({len(issued) - 1 - last})")
        a("s_barrier")
    for b in (K1R(0), K1R(4), k2b, VA(0), VB(0)): dma(b)
    a(f"""
    s_lshl_b32 s19, s28, 15             ; kh*32768
    v_add_u32 v{AK1}, s19, v{VL16}
    v_and_b32 v{T1}, 31, v2             ; m = lane&31
    s_lshl_b32 s19, s28, 12             ; kh*4096
    s_add_u32 s19, s19, {KV_K2}
    v_lshlrev_b32 v{AK2}, 4, v{T1}
    v_add_u32 v{AK2}, s19, v{AK2}
    v_subrev_u32 v{T2}, 20, v{T1}       ; m-20
    v_cmp_gt_u32 vcc, 20, v{T1}         ; m < 20
    v_lshrrev_b32 v{T3}, 5, v2          ; h
    s_mul_i32 s19, s28, 38912
    v_cndmask_b32 v{T2}, v{T2}, v{T1}, vcc
    v_cmp_eq_u32 vcc, 19, v{T1}
    v_mul_u32_u24 v{T3}, 304, v{T3}
    v_mov_b32 v{T0}, 16
    v_cndmask_b32 v{T2}, v{T2}, v{T0}, vcc
    s_add_u32 s19, s19, {KV_V}
    v_lshl_add_u32 v{AV}, v{T2}, 4, v{T3}
    v_add_u32 v{AV}, s19, v{AV}
    """)
    if "novz" not in var:
        a(f"""
        v_cmp_lt_u32 vcc, 18, v{T1}
        v_add_u32 v{T0}, 0x40000, v{AV}
        s_nop 1
        v_cndmask_b32 v{AV}, v{AV}, v{T0}, vcc
        """)
    for q in range(2):
        a(f"v_mov_b32 v{Q2[q][0]+1}, 0")
        a(f"v_mov_b32 v{Q2[q][1]}, 0")
        for i in range(16): a(f"v_mov_b32 v{O[q]+i}, 0")
    for i in range(4): a(f"v_accvgpr_write_b32 a{24+i}, 0" if AG else f"v_mov_b32 v{V1b[1]+i}, 0")
    for i in range(4): a(f"v_mov_b32 v{P+4+i}, 0")
    for i in range(4): a(f"v_mov_b32 v{Sb[1]+12+i}, 0")
    rq = []
    done = [0]
    def rd(tag, text):
        if "noread" in var: return
        a(text); rq.append(tag)
    def need(tag):
        if "noread" in var: return
        idx = len(rq) - 1 - rq[::-1].index(tag)
        if idx >= done[0]:
            a(f"s_waitcnt lgkmcnt({len(rq) - 1 - idx})")
            done[0] = idx + 1
    base = {'k1': 0, 'v': 0}
    def rdK1(kt): rd(('K1', kt), f"ds_read_b128 {fr(K1b[kt&1],4)}, v{AK1} offset:{(kt-base['k1'])*1024}")
    def rdK2(j):  rd(('K2', j), f"ds_read_b128 {fr(K2b[j&1],4)}, v{AK2} offset:{j*512}")
    def rdV0(kt): rd(('V0', kt), f"ds_read_b128 {fr(V0b[kt&1],4)}, v{AV} offset:{(2*(kt-base['v']))*608}")
    def rdV1(kt): rd(('V1', kt), f"ds_read_b128 {fr(V1b[kt&1],4)}, v{AV} offset:{(2*(kt-base['v'])+1)*608}")
    def Ma(kt, q): return f"v_mfma_f32_32x32x16_bf16 {vr(Sb[q],16)}, {fr(K1b[kt&1],4)}, {vr(Q1[q],4)}, 0"
    def Mb(kt, q): return f"v_mfma_f32_32x32x8bf16_1k {vr(Sb[q],16)}, {fr(K2b[(kt>>2)&1]+2*((kt>>1)&1),2)}, {vr(Q2[q][kt&1],2)}, {vr(Sb[q],16)}"
    def Md(q, kt): return f"v_mfma_f32_32x32x16_bf16 {vr(O[q],16)}, {fr(V1b[kt&1],4)}, {vr(P+4,4)}, {vr(O[q],16)}"
    def Mc(q, kt): return f"v_mfma_f32_32x32x16_bf16 {vr(O[q],16)}, {fr(V0b[kt&1],4)}, {vr(P,4)}, {vr(O[q],16)}"
    a("s_waitcnt vmcnt(0)\ns_barrier")
    a(f"""
    v_mov_b32 v{Q2[0][1]+1}, v{Q2[0][0]}
    v_mov_b32 v{Q2[1][1]+1}, v{Q2[1][0]}
    """)
    rdK1(0); rdK2(0); rdV0(0); rdK1(1); rdV1(0)
    for b in (VA(1), VB(1), K1R(1), K1R(5)): dma(b)
    need(('K2', 0))
    a(Ma(0, 0)); a(Mb(0, 0))
    need(('V1', 0))
    a("s_nop 11")
    if prof: a("s_memtime s[42:43]\ns_waitcnt lgkmcnt(0)")
    later = [VA(2), VB(2), K1R(2), K1R(6), VA(3), VB(3), K1R(3), K1R(7), VA(4), VB(4)]
    sync_at = {5: [VA(1), VB(1), K1R(1), K1R(5)], 12: later}
    NKT = 32
    def E1(r): a(f"v_exp_f32 v{r}, v{r}")
    def C(buf, g):
        if "nocvt" in var: return
        b = buf + 4 * g
        a(f"v_cvt_pk_bf16_f32 v{P+2*g}, v{b}, v{b+1}")
        a(f"v_cvt_pk_bf16_f32 v{P+2*g+1}, v{b+2}, v{b+3}")
    def MF(text):
        if "nomfma" not in var: a(text)
    for u in range(2 * NKT):
        kt, q = u >> 1, u & 1
        kn, qn = (u + 1) >> 1, (u + 1) & 1
        kp, qp_ = (u - 1) >> 1, (u - 1) & 1
        cur, oth = Sb[q], Sb[qn]
        last = (u == 2 * NKT - 1)
        reads = []
        if q == 0:
            if kt + 1 < NKT: reads.append(lambda k=kt + 1: rdV0(k))
            if (kt & 3) == 1 and (kt >> 2) + 1 < NKT // 4: reads.append(lambda j=(kt >> 2) + 1: rdK2(j))
        else:
            if kt + 2 < NKT: reads.append(lambda k=kt + 2: rdK1(k))
            if kt + 1 < NKT: reads.append(lambda k=kt + 1: rdV1(k))
        n0 = len(rq)
        for g in range(4):
            b = cur + 4 * g
            for i in range(4): E1(b + i)
            if g == 0: C(oth, 3)
            else: C(cur, g - 1)
            if g == 0:
                if not last: MF(Ma(kn, qn))
                if reads: reads.pop(0)()
            elif g == 1:
                if not last: MF(Mb(kn, qn))
            elif g == 2:
                MF(Md(qp_, kp) if u > 0 else Md(1, 1))
                if reads: reads.pop(0)()
            else:
                MF(Mc(q, kt))
                if "noread" not in var and n0 > done[0]:
                    a(f"s_waitcnt lgkmcnt({len(rq) - n0})"); done[0] = n0
                if q == 0 and kt < len(later): dma(later[kt])
                if qn == 0 and kn in sync_at and "nobar" not in var: arrive(sync_at[kn])
    a(f"""
    v_cvt_pk_bf16_f32 v{P+6}, v{Sb[1]+12}, v{Sb[1]+13}
    v_cvt_pk_bf16_f32 v{P+7}, v{Sb[1]+14}, v{Sb[1]+15}
    """)
    need(('V1', NKT - 1))
    a(f"""
    s_nop 1
    {Md(1, NKT - 1)}
    """)
    if prof: a("s_memtime s[44:45]\ns_waitcnt lgkmcnt(0)")
    Lq1 = f"L_{name}_q1"; Lx = f"L_{name}_x"
    XO = O[0]
    a(f"""
    s_barrier
    s_mul_i32 s19, s10, 3072
    v_add_u32 v{T0}, s19, v{VL16}
    s_xor_b32 s19, s10, 4
    s_mul_i32 s19, s19, 3072
    v_add_u32 v{T1}, s19, v{VL16}
    s_nop 7
    s_cmp_eq_u32 s28, 0
    s_cbranch_scc0 {Lq1}
    ds_write_b128 v{T0}, {vr(O[1],4)}
    ds_write_b128 v{T0}, {vr(O[1]+4,4)} offset:1024
    ds_write_b128 v{T0}, {vr(O[1]+8,4)} offset:2048
    s_branch {Lx}
    {Lq1}:
    ds_write_b128 v{T0}, {vr(O[0],4)}
    ds_write_b128 v{T0}, {vr(O[0]+4,4)} offset:1024
    ds_write_b128 v{T0}, {vr(O[0]+8,4)} offset:2048
    s_waitcnt lgkmcnt(0)
    """)
    for i in range(12): a(f"v_mov_b32 v{O[0]+i}, v{O[1]+i}")
    a(f"""
    {Lx}:
    s_waitcnt lgkmcnt(0)
    s_barrier
    ds_read_b128 {vr(Sb[0],4)}, v{T1}
    ds_read_b128 {vr(Sb[0]+4,4)}, v{T1} offset:1024
    ds_read_b128 {vr(Sb[0]+8,4)}, v{T1} offset:2048
    s_add_u32 s11, s11, s28
    s_waitcnt lgkmcnt(0)
    """)
    for i in range(11): a(f"v_add_f32 v{XO+i}, v{XO+i}, v{Sb[0]+i}")
    Lslow = f"L_{name}_slow"; Lfin = f"L_{name}_fin"
    a(f"""
    v_mov_b32 v{T1}, 0
    v_mov_b32 v{T0}, v{XO+10}
    s_mov_b32 s21, 0x1f800000           ; 2^-64
    s_mov_b32 s22, 0x5f800000           ; 2^64
    v_permlane32_swap_b32 v{T0}, v{XO+10}
    """)
    for i in range(10): a(f"v_fma_f32 v{T1}, v{XO+i}, 0, v{T1}")
    a(f"""
    v_cmp_nge_f32 s[24:25], v{T0}, s21
    v_cmp_nle_f32 s[26:27], v{T0}, s22
    v_cmp_u_f32 vcc, v{T1}, v{T1}
    s_nop 4
    s_or_b64 s[24:25], s[24:25], s[26:27]
    s_or_b64 s[24:25], s[24:25], vcc
    s_cmp_lg_u64 s[24:25], 0
    """)
    if "noslow" not in var: a(f"s_cbranch_scc1 {Lslow}")
    a.label(Lfin)
    a(f"""
    v_rcp_f32 v{T1}, v{T0}
    v_lshrrev_b32 v{T2}, 5, v2
    v_and_b32 v{T3}, 31, v2
    v_lshlrev_b32 v{T3}, 4, v{T3}       ; n*16
    v_mul_u32_u24 v{T2}, {BLK}, v{T2}
    v_add_u32 v{T2}, v{T2}, v{T3}
    """)
    for i in range(10): a(f"v_mul_f32 v{XO+i}, v{XO+i}, v{T1}")
    for i in range(5): a(f"v_cvt_pk_bf16_f32 v{P+i}, v{XO+2*i}, v{XO+2*i+1}")
    a(f"""
    s_mul_i32 s16, s8, {2*BLK}
    s_lshl_b32 s17, s11, 9
    s_add_u32 s16, s16, s17
    s_add_u32 s16, s16, {WS_O}
    s_lshr_b32 s19, s8, 2
    s_mul_i32 s19, s19, {BLK}
    s_add_u32 s19, s19, s17
    s_and_b32 s21, s8, 3
    s_lshl_b32 s21, s21, 2
    s_add_u32 s19, s19, s21
    s_add_u32 s19, s19, {WS_O + 64*BLK}
    buffer_store_dwordx4 {vr(P,4)}, v{T2}, s[4:7], s16 offen
    s_mov_b32 exec_hi, 0
    buffer_store_dword v{P+4}, v{T3}, s[4:7], s19 offen
    s_mov_b32 exec_hi, -1
    """)
    if prof:
        a(f"""
        s_waitcnt vmcnt(0)
        s_memtime s[46:47]
        s_memrealtime s[52:53]
        s_waitcnt lgkmcnt(0)
        s_sub_u32 s42, s42, s40
        s_sub_u32 s44, s44, s40
        s_sub_u32 s46, s46, s40
        s_sub_u32 s52, s52, s50
        v_mov_b32 v4, s42
        v_mov_b32 v5, s44
        v_mov_b32 v6, s46
        v_mov_b32 v7, s52
        s_lshl_b32 s16, s2, 3
        s_add_u32 s16, s16, s10
        s_lshl_b32 s16, s16, 4
        s_add_u32 s16, s16, 0x1700000
        v_mov_b32 v8, 0
        s_mov_b32 exec_hi, 0
        s_mov_b32 exec_lo, 1
        buffer_store_dwordx4 v[4:7], v8, s[4:7], s16 offen
        s_waitcnt vmcnt(0)
        """)
    a.label(Lend)
    a("s_endpgm")
    a.label(Lslow)
    S0 = Sb[0]; OO = O[0]
    Lsq = f"L_{name}_sq"
    a(f"""
    s_cmp_eq_u32 s28, 0
    s_cbranch_scc1 {Lsq}
    """)
    for i in range(4): a(f"v_mov_b32 v{Q1[0]+i}, v{Q1[1]+i}")
    for i in range(4): a(f"v_mov_b32 v{Q2[0][0]+i}, v{Q2[1][0]+i}")
    a(f"""
    {Lsq}:
    s_lshl_b32 s19, s28, 12
    v_subrev_u32 v{AK2}, s19, v{AK2}
    s_mul_i32 s19, s28, 38912
    v_subrev_u32 v{AV}, s19, v{AV}
    v_mov_b32 v{M}, 0xff800000
    """)
    for i in range(16): a(f"v_mov_b32 v{OO+i}, 0")
    a(f"s_mov_b32 s20, 0\ns_add_u32 s29, s14, {WS_KV}")
    Ls = f"L_{name}_sloop"
    a.label(Ls)
    a(f"ds_read_b128 {fr(K2,4)}, v{AK2}")
    for i4 in range(4):
        a(f"""
        buffer_load_dwordx4 {vr(K1,4)}, v{VL16}, s[4:7], s29 offen offset:{i4*1024}
        ds_read_b128 {vr(V0,4)}, v{AV} offset:{2*i4*608}
        ds_read_b128 {vr(V1,4)}, v{AV} offset:{(2*i4+1)*608}
        s_waitcnt vmcnt(0) lgkmcnt(0)
        v_mfma_f32_32x32x16_bf16 {vr(S0,16)}, {vr(K1,4)}, {vr(Q1[0],4)}, 0
        v_mfma_f32_32x32x8bf16_1k {vr(S0,16)}, {vr(K2+2*(i4>>1),2)}, {vr(Q2[0][i4&1],2)}, {vr(S0,16)}
        s_nop 15
        s_nop 7
        v_max3_f32 v{T0}, v{S0}, v{S0+1}, v{S0+2}
        """)
        for i in range(3, 15, 2): a(f"v_max3_f32 v{T0}, v{T0}, v{S0+i}, v{S0+i+1}")
        a(f"""
        v_max_f32 v{T0}, v{T0}, v{S0+15}
        s_nop 1
        v_mov_b32 v{T1}, v{T0}
        s_nop 1
        v_permlane32_swap_b32 v{T1}, v{T0}
        s_nop 1
        v_max3_f32 v{T0}, v{T0}, v{T1}, v{M}
        v_sub_f32 v{T1}, v{M}, v{T0}
        v_exp_f32 v{T1}, v{T1}
        v_mov_b32 v{M}, v{T0}
        """)
        for i in range(16): a(f"v_sub_f32 v{S0+i}, v{S0+i}, v{M}")
        for i in range(16): a(f"v_exp_f32 v{S0+i}, v{S0+i}")
        for i in range(16): a(f"v_mul_f32 v{OO+i}, v{OO+i}, v{T1}")
        for i in range(8): a(f"v_cvt_pk_bf16_f32 v{P+i}, v{S0+2*i}, v{S0+2*i+1}")
        a(f"""
        s_nop 1
        v_mfma_f32_32x32x16_bf16 {vr(OO,16)}, {vr(V0,4)}, {vr(P,4)}, {vr(OO,16)}
        v_mfma_f32_32x32x16_bf16 {vr(OO,16)}, {vr(V1,4)}, {vr(P+4,4)}, {vr(OO,16)}
        s_nop 15
        s_nop 3
        """)
    a(f"""
    v_add_u32 v{AK2}, 512, v{AK2}
    v_add_u32 v{AV}, {4*1216}, v{AV}
    s_add_u32 s29, s29, 4096
    s_add_u32 s20, s20, 1
    s_cmp_lt_u32 s20, 16
    s_cbranch_scc1 {Ls}
    v_mov_b32 v{T0}, v{OO+10}
    s_nop 1
    v_permlane32_swap_b32 v{T0}, v{OO+10}
    s_nop 1
    s_branch {Lfin}
    """)
    kernel_desc(a, name, 136 + (32 if AG else 0), accum=136, denorm=(0 if "dn0" in var else 3))
```

```python
from asmlib import *
from layout import *
import struct
def f2u(x): return struct.unpack('<I', struct.pack('<f', x))[0]
C_LDS = 110592
NCWG = 192

def emit_c_body(a, name, layer, sid, prof=False):
    L = lambda x: f"L_{name}_{x}"
    pf = Prof(a, prof)
    pf.stamp_at(0)
    a(f"""
    s_load_dwordx2 s[12:13], s[0:1], {KA_WS}
    s_load_dwordx2 s[16:17], s[0:1], {KA_X if layer == 0 else KA_OUT}
    s_and_b32 s8, s{sid}, 7
    s_lshr_b32 s9, s{sid}, 3            ; 0..23
    s_mul_i32 s11, s9, 43
    s_lshr_b32 s11, s11, 8              ; /6
    s_mul_i32 s14, s11, 6
    s_sub_u32 s9, s9, s14               ; member j
    s_lshl_b32 s11, s11, 3
    s_or_b32 s8, s8, s11
    v_lshrrev_b32 v1, 6, v0
    v_and_b32 v2, 63, v0                ; lane
    v_readfirstlane_b32 s10, v1         ; wave
    v_lshlrev_b32 v7, 4, v2             ; lane*16
    s_cmp_ge_u32 s10, 4
    s_cbranch_scc0 {L('compute')}
    """)
    a(f"""
    s_sub_u32 s28, s10, 4
    s_lshl_b32 s38, s28, 10
    s_mul_i32 s36, s9, {108*1024}
    s_add_u32 s36, s36, s38
    s_add_u32 s36, s36, {WS_WOF}
    s_waitcnt lgkmcnt(0)
    """)
    srd(a, 4, 12, WS_BYTES)
    for r in range(27):
        a(f"s_add_u32 m0, s38, {r*4096}")
        a(f"s_add_u32 s40, s36, {r*4096}")
        a(f"buffer_load_dwordx4 v7, s[4:7], s40 offen lds")
    SYNC = {0: 5, 4: 14, 10: 26}
    for ks, r in SYNC.items():
        a(f"s_waitcnt vmcnt({26 - r})")
        a("s_barrier")
    a(f"s_branch {L('end')}")
    a.label(L('compute'))
    OF = 8
    AF = [80, 104]
    ACC = 128
    RES = 152
    YV = 164
    T = 176
    n_, q_ = T, T + 1
    a(f"""
    v_and_b32 v{n_}, 15, v2
    v_lshrrev_b32 v{q_}, 4, v2
    s_lshl_b32 s30, s8, 6
    s_lshl_b32 s31, s10, 4
    s_add_u32 s30, s30, s31
    v_mul_u32_u24 v{T+2}, {BLK}, v{q_}
    v_lshl_add_u32 v{T+2}, v{n_}, 4, v{T+2}
    s_lshl_b32 s31, s30, 4
    s_add_u32 s31, s31, {WS_O}
    s_waitcnt lgkmcnt(0)
    """)
    srd(a, 4, 12, WS_BYTES)
    srd(a, 24, 16, S * D * 2)
    for ks in range(18):
        a(f"buffer_load_dwordx4 {vr(OF+4*ks,4)}, v{T+2}, s[4:7], s31 offen")
        if ks < 17: a(f"s_add_u32 s31, s31, {4*BLK}")
    a(f"""
    v_mul_u32_u24 v{T+3}, 1152, v{n_}
    v_lshl_add_u32 v{T+3}, v{q_}, 3, v{T+3}
    s_mul_i32 s32, s30, 1152
    s_mul_i32 s33, s9, 192
    s_add_u32 s32, s32, s33
    v_lshrrev_b32 v{T+4}, 1, v{q_}
    v_mul_u32_u24 v{T+4}, {BLK}, v{T+4}
    v_lshl_add_u32 v{T+4}, v{n_}, 4, v{T+4}
    v_and_b32 v{T+5}, 1, v{q_}
    v_lshl_add_u32 v{T+4}, v{T+5}, 3, v{T+4}
    s_mul_i32 s33, s9, {12*BLK}
    s_lshl_b32 s34, s30, 4
    s_add_u32 s33, s33, s34
    s_add_u32 s33, s33, {WS_X2}
    v_mul_u32_u24 v{T+5}, {2*YP}, v{q_}
    v_lshl_add_u32 v{T+5}, v{n_}, 2, v{T+5}
    s_mul_i32 s34, s9, {48*YP}
    s_lshl_b32 s35, s30, 2
    s_add_u32 s34, s34, s35
    s_add_u32 s34, s34, {WS_Y}
    """)
    for f in range(6):
        if layer == 0:
            a(f"buffer_load_dwordx2 {vr(RES+2*f,2)}, v{T+3}, s[24:27], s32 offen offset:{32*f}")
        else:
            a(f"s_add_u32 s35, s33, {2*f*BLK}")
            a(f"buffer_load_dwordx2 {vr(RES+2*f,2)}, v{T+4}, s[4:7], s35 offen")
    for f in range(6):
        a(f"s_add_u32 s35, s34, {8*f*YP}")
        a(f"buffer_load_dword v{YV+2*f}, v{T+5}, s[4:7], s35 offen")
        a(f"s_add_u32 s35, s35, {YP}")
        a(f"buffer_load_dword v{YV+2*f+1}, v{T+5}, s[4:7], s35 offen")
    nextra = 6 + 12
    for i in range(24): a(f"v_mov_b32 v{ACC+i}, 0")
    a(f"v_add_u32 v{T+6}, 55296, v7")
    def rd(ks):
        base, off = (7, ks * 6144) if ks < 9 else (T + 6, (ks - 9) * 6144)
        return [f"ds_read_b128 {vr(AF[ks&1]+4*f,4)}, v{base} offset:{off + f*1024}" for f in range(6)]
    SYNC = {0, 4, 10}
    pf.stamp_at(1)
    a("s_barrier")
    pf.stamp_at(2)
    for r in rd(0): a(r)
    for ks in range(18):
        if ks + 1 in SYNC: a("s_barrier")
        nxt = rd(ks + 1) if ks + 1 < 18 else []
        a(f"s_waitcnt vmcnt({17 - ks + nextra}) lgkmcnt(0)")
        for f in range(6):
            a(f"v_mfma_f32_16x16x32_bf16 {vr(ACC+4*f,4)}, {vr(AF[ks&1]+4*f,4)}, {vr(OF+4*ks,4)}, {vr(ACC+4*f,4)}")
            if f < len(nxt): a(nxt[f])
    pf.stamp_at(3)
    X = 8
    S1, S2 = T + 8, T + 9
    a("s_waitcnt vmcnt(0)\ns_nop 7")
    for f in range(6):
        a(f"v_lshlrev_b32 v{X+4*f}, 16, v{RES+2*f}")
        a(f"v_and_b32 v{X+4*f+1}, 0xffff0000, v{RES+2*f}")
        a(f"v_lshlrev_b32 v{X+4*f+2}, 16, v{RES+2*f+1}")
        a(f"v_and_b32 v{X+4*f+3}, 0xffff0000, v{RES+2*f+1}")
    for i in range(24): a(f"v_add_f32 v{X+i}, v{X+i}, v{ACC+i}")
    def row_sums(base):
        a(f"v_add_f32 v{S1}, v{base}, v{base+1}")
        a(f"v_mul_f32 v{S2}, v{base}, v{base}")
        a(f"v_fmac_f32 v{S2}, v{base+1}, v{base+1}")
        for i in range(2, 24):
            a(f"v_add_f32 v{S1}, v{S1}, v{base+i}")
            a(f"v_fmac_f32 v{S2}, v{base+i}, v{base+i}")
        quad_reduce()
    def quad_reduce():
        for r in (S1, S2): a(f"v_mov_b32 v{r+2}, v{r}")
        a("s_nop 1")
        for r in (S1, S2): a(f"v_permlane32_swap_b32 v{r+2}, v{r}")
        a("s_nop 1")
        for r in (S1, S2): a(f"v_add_f32 v{r}, v{r}, v{r+2}")
        for r in (S1, S2): a(f"v_mov_b32 v{r+2}, v{r}")
        a("s_nop 1")
        for r in (S1, S2): a(f"v_permlane16_swap_b32 v{r+2}, v{r}")
        a("s_nop 1")
        for r in (S1, S2): a(f"v_add_f32 v{r}, v{r}, v{r+2}")
    row_sums(X)
    G = T + 12
    a(f"""
    v_or_b32 v{S2}, 0x80000000, v{S2}
    v_mul_u32_u24 v{G}, 48, v{n_}
    s_mul_i32 s35, s30, 48
    s_add_u32 s35, s35, {WS_GR + layer * GR_LAYER}
    s_lshl_b32 s36, s9, 3
    s_add_u32 s36, s36, s35
    s_mov_b64 exec, 0xffff
    buffer_store_dwordx2 v[{S1}:{S2}], v{G}, s[4:7], s36 offen sc0 sc1
    s_mov_b64 exec, -1
    v_lshl_add_u32 v{G+1}, v{q_}, 3, v{G}
    v_and_b32 v{G+2}, 1, v{q_}
    v_lshl_add_u32 v{G+2}, v{G+2}, 3, v{G}
    s_mov_b32 s37, 0
    {L('poll')}:
    buffer_load_dwordx2 v[{G+4}:{G+5}], v{G+1}, s[4:7], s35 offen sc0 sc1
    buffer_load_dwordx2 v[{G+6}:{G+7}], v{G+2}, s[4:7], s35 offen offset:32 sc0 sc1
    s_add_u32 s37, s37, 1
    s_waitcnt vmcnt(0)
    v_and_b32 v{G+3}, v{G+5}, v{G+7}
    v_cmp_gt_i32 vcc, 0, v{G+3}
    s_nop 4
    s_cmp_eq_u64 vcc, -1
    s_cbranch_scc1 {L('got')}
    s_cmp_lt_u32 s37, 0x100000
    s_cbranch_scc1 {L('poll')}
    {L('got')}:
    """)
    pf.stamp_at(4)
    a(f"""
    v_and_b32 v{G+5}, 0x7fffffff, v{G+5}
    v_and_b32 v{G+7}, 0x7fffffff, v{G+7}
    v_cmp_gt_u32 vcc, 2, v{q_}
    s_nop 1
    v_cndmask_b32 v{G+6}, 0, v{G+6}, vcc
    v_cndmask_b32 v{G+7}, 0, v{G+7}, vcc
    v_add_f32 v{S1}, v{G+4}, v{G+6}
    v_add_f32 v{S2}, v{G+5}, v{G+7}
    """)
    quad_reduce()
    a(f"""
    s_mov_b32 s43, {f2u(1.0/576):#x}
    v_mul_f32 v{S1}, s43, v{S1}          ; mean
    v_mul_f32 v{S2}, s43, v{S2}
    v_fma_f32 v{S2}, -v{S1}, v{S1}, v{S2}
    v_max_f32 v{S2}, 0, v{S2}
    v_add_f32 v{S2}, {f2u(1e-5):#x}, v{S2}
    v_rsq_f32 v{S2}, v{S2}
    """)
    for i in range(12):
        a(f"v_lshlrev_b32 v{ACC+2*i}, 16, v{YV+i}")
        a(f"v_and_b32 v{ACC+2*i+1}, 0xffff0000, v{YV+i}")
    for i in range(24):
        a(f"v_sub_f32 v{32+i}, v{X+i}, v{S1}")
    for i in range(24):
        a(f"v_mul_f32 v{32+i}, v{32+i}, v{S2}")
    for i in range(24):
        a(f"v_fmac_f32 v{X+i}, v{32+i}, v{ACC+i}")
    for i in range(12):
        a(f"v_cvt_pk_bf16_f32 v{56+i}, v{X+2*i}, v{X+2*i+1}")
    if layer == 0:
        for f in range(6):
            a(f"s_add_u32 s35, s33, {2*f*BLK}")
            a(f"buffer_store_dwordx2 {vr(56+2*f,2)}, v{T+4}, s[4:7], s35 offen")
        for i in range(12):
            a(f"v_lshlrev_b32 v{X+2*i}, 16, v{56+i}")
            a(f"v_and_b32 v{X+2*i+1}, 0xffff0000, v{56+i}")
        row_sums(X)
        a(f"""
        s_mul_i32 s35, s30, 48
        s_lshl_b32 s36, s9, 3
        s_add_u32 s35, s35, s36
        s_add_u32 s35, s35, {WS_PS}
        s_mov_b64 exec, 0xffff
        buffer_store_dwordx2 v[{S1}:{S2}], v{G}, s[4:7], s35 offen
        s_mov_b64 exec, -1
        """)
    else:
        for f in range(6):
            a(f"buffer_store_dwordx2 {vr(56+2*f,2)}, v{T+3}, s[24:27], s32 offen offset:{32*f}")
    a.label(L('end'))
    if prof:
        pf.stamp_at(5)
        a("s_waitcnt vmcnt(0)")
        pf.stamp_at(6)
        pf.dump(4, sid, 10)
```

```python
from asmlib import *
from layout import *
NCONV = 288
CONV_LDS = 65536 + 2 * 4608
HB = [0, 4352]
UB = [65536, 65536 + 4608]

def emit_conv_body(a, name, sid):
    L = lambda x: f"L_{name}_{x}"
    a(f"""
    s_load_dwordx2 s[12:13], s[0:1], {KA_WS}
    s_load_dwordx2 s[14:15], s[0:1], {KA_SSMK}
    s_load_dwordx2 s[16:17], s[0:1], {KA_SSMD}
    v_lshrrev_b32 v1, 6, v0
    v_and_b32 v2, 63, v0
    v_readfirstlane_b32 s10, v1
    v_lshlrev_b32 v7, 4, v2             ; lane*16
    s_lshr_b32 s28, s10, 2
    s_and_b32 s29, s10, 3
    s_lshl_b32 s8, s{sid}, 1
    s_waitcnt lgkmcnt(0)
    s_lshl_b32 s9, s{sid}, 2
    s_add_u32 s16, s16, s9
    s_addc_u32 s17, s17, 0
    s_load_dword s33, s[16:17], 0
    """)
    srd(a, 4, 12, WS_BYTES)
    srd(a, 20, 14, 576 * 4096)
    a(f"""
    s_add_u32 s30, s8, s28
    s_lshl_b32 s30, s30, 12
    s_lshl_b32 s31, s29, 10
    s_add_u32 s30, s30, s31
    s_mul_i32 s32, s28, {HB[1]}
    s_add_u32 s32, s32, s31
    s_add_u32 m0, s32, 32
    s_add_u32 s34, s30, {WS_UT}
    buffer_load_dwordx4 v7, s[20:23], s30 offen lds
    s_mul_i32 s32, s28, 4608
    s_add_u32 s32, s32, s31
    s_add_u32 m0, s32, {UB[0] + 512}
    v_mov_b32 v8, 0
    buffer_load_dwordx4 v7, s[4:7], s34 offen lds
    v_mov_b32 v9, 0
    v_mov_b32 v10, 0
    v_mov_b32 v11, 0
    s_cmp_eq_u32 s29, 0
    s_cbranch_scc0 {L('nz')}
    s_mul_i32 s32, s28, 4608
    s_add_u32 s32, s32, {UB[0]}
    v_add_u32 v12, s32, v7
    s_mul_i32 s32, s28, {HB[1]}
    v_add_u32 v13, s32, v7
    s_mov_b32 exec_hi, 0
    ds_write_b128 v12, v[8:11]
    s_mov_b32 exec_lo, 3
    ds_write_b128 v13, v[8:11]
    s_mov_b64 exec, -1
    {L('nz')}:
    """)
    A, B, Y = 16, 48, 80
    AA, AB = 3, 4
    a(f"""
    v_and_b32 v12, 15, v2               ; b / a
    v_lshrrev_b32 v13, 5, v2            ; delta'
    v_bfe_u32 v14, v2, 4, 1             ; eh
    v_lshlrev_b32 v{AA}, 1, v12
    v_lshl_add_u32 v{AA}, v13, 5, v{AA}
    v_lshl_add_u32 v{AA}, v14, 4, v{AA}
    s_mul_i32 s32, s28, {HB[1]}
    s_lshl_b32 s34, s29, 7              ; 32 * (4 cq)
    s_add_u32 s32, s32, s34
    s_add_u32 s32, s32, 2
    v_add_u32 v{AA}, s32, v{AA}
    v_sub_u32 v{AB}, v12, v13
    v_lshlrev_b32 v{AB}, 5, v{AB}
    v_lshl_add_u32 v{AB}, v14, 4, v{AB}
    s_mul_i32 s32, s28, 4608
    s_add_u32 s32, s32, {UB[0] + 512}
    s_sub_u32 s32, s32, s34
    v_add_u32 v{AB}, s32, v{AB}
    """)
    for i in range(32): a(f"v_mov_b32 v{Y+i}, 0")
    a("s_waitcnt vmcnt(0) lgkmcnt(0)\ns_barrier")
    for cls in range(2):
        for d in range(8):
            a(f"ds_read_b128 {vr(A+4*d,4)}, v{AA} offset:{512*d + 64*cls}")
            a(f"ds_read_b128 {vr(B+4*d,4)}, v{AB} offset:{512*d}")
        if cls == 0: a(f"v_subrev_u32 v{AB}, 64, v{AB}")
        for n in range(8):
            a(f"s_waitcnt lgkmcnt({min(15, 2*(7-n))})")
            for d in range(n + 1):
                a(f"v_mfma_f32_16x16x32_bf16 {vr(Y+4*n,4)}, {vr(A+4*d,4)}, {vr(B+4*(n-d),4)}, {vr(Y+4*n,4)}")
    a(f"""
    s_barrier
    s_lshl_b32 s32, s10, 13
    v_add_u32 v12, s32, v7
    s_nop 7
    """)
    for n in range(8): a(f"ds_write_b128 v12, {vr(Y+4*n,4)} offset:{1024*n}")
    a(f"""
    s_waitcnt lgkmcnt(0)
    s_barrier
    s_lshl_b32 s32, s10, 10
    v_add_u32 v12, s32, v7
    """)
    for p in range(8):
        base, off = (12, p * 8192)
        a(f"ds_read_b128 {vr(A+4*p,4)}, v12 offset:{off}")
    a(f"""
    v_and_b32 v13, 15, v2
    v_lshrrev_b32 v14, 4, v2
    v_lshlrev_b32 v15, 5, v13
    v_lshlrev_b32 v5, 3, v14
    v_sub_u32 v15, v15, v5
    s_lshl_b32 s32, s10, 9
    s_add_u32 s32, s32, {UB[0] + 512 + 24}
    v_add_u32 v15, s32, v15
    ds_read_b64 v[48:49], v15
    ds_read_b64 v[50:51], v15 offset:4608
    v_lshlrev_b32 v6, 6, v13
    v_lshl_add_u32 v6, v14, 4, v6
    s_mul_i32 s34, s{sid}, {YP}
    s_lshl_b32 s32, s10, 10
    s_add_u32 s34, s34, s32
    s_add_u32 s34, s34, {WS_Y}
    s_lshl_b32 s35, s33, 16             ; D ch0
    s_and_b32 s36, s33, 0xffff0000      ; D ch1
    s_waitcnt lgkmcnt(0)
    """)
    for ch in range(2):
        o = A + 16 * ch
        for r in range(4):
            a(f"v_add_f32 v{o+r}, v{o+r}, v{o+4+r}")
            a(f"v_add_f32 v{o+8+r}, v{o+8+r}, v{o+12+r}")
            a(f"v_add_f32 v{o+r}, v{o+r}, v{o+8+r}")
        u0, u1 = 48 + 2 * ch, 49 + 2 * ch
        a(f"v_and_b32 v52, 0xffff0000, v{u1}\nv_lshlrev_b32 v53, 16, v{u1}\nv_and_b32 v54, 0xffff0000, v{u0}\nv_lshlrev_b32 v55, 16, v{u0}")
        for r in range(4):
            a(f"v_fma_f32 v{o+r}, v{52+r}, s{35+ch}, v{o+r}")
    for r in range(4):
        a(f"v_cvt_pk_bf16_f32 v{56+r}, v{A+r}, v{A+16+r}")
    a(f"buffer_store_dwordx4 v[56:59], v6, s[4:7], s34 offen")
```

```python
from asmlib import *
from layout import *
import struct
def f2u(x): return struct.unpack('<I', struct.pack('<f', x))[0]

N_T1, N_T4, N_T2, N_T3 = 64, 144, 56, 54
NPREP = N_T1 + N_T4 + N_T2 + N_T3
PREP_LDS = 64 * 65 * 4 + 64

def emit_prep(a, name):
    L = lambda x: f"L_{name}_{x}"
    kernel_head(a, name)
    a(f"""
    s_cmp_ge_u32 s2, {NPREP}
    s_cbranch_scc1 {L('exit')}
    s_load_dwordx2 s[12:13], s[0:1], {KA_WS}
    v_lshrrev_b32 v1, 6, v0
    v_and_b32 v2, 63, v0
    v_readfirstlane_b32 s10, v1
    s_cmp_lt_u32 s2, {N_T1}
    s_cbranch_scc1 {L('t1')}
    s_cmp_lt_u32 s2, {N_T1+N_T4}
    s_cbranch_scc1 {L('t4')}
    s_cmp_lt_u32 s2, {N_T1+N_T4+N_T2}
    s_cbranch_scc1 {L('t2')}
    """)
    a(f"""
    s_load_dwordx2 s[14:15], s[0:1], {KA_WO}
    s_sub_u32 s8, s2, {N_T1+N_T4+N_T2}
    s_mul_i32 s8, s8, 12
    s_mul_i32 s9, s10, 3
    s_add_u32 s8, s8, s9
    v_and_b32 v3, 15, v2                ; m
    v_lshrrev_b32 v4, 4, v2             ; kg
    v_lshrrev_b32 v5, 1, v4
    v_mul_u32_u24 v5, 18, v5
    v_and_b32 v6, 1, v4
    v_lshl_add_u32 v5, v6, 2, v5
    v_mul_u32_u24 v5, 1152, v5
    v_lshl_add_u32 v5, v3, 1, v5
    v_mul_u32_u24 v6, {72*1152}, v4
    v_lshl_add_u32 v6, v3, 1, v6
    v_lshlrev_b32 v7, 4, v2
    s_waitcnt lgkmcnt(0)
    """)
    srd(a, 4, 12, WS_BYTES)
    srd(a, 20, 14, 576 * 1152)
    for n in range(3):
        Lx = L(f't3x{n}'); Lj = L(f't3j{n}')
        a(f"""
        s_add_u32 s24, s8, {n}              ; F
        s_mul_i32 s25, s24, 607
        s_lshr_b32 s25, s25, 16             ; j = F/108
        s_mul_i32 s26, s25, 108
        s_sub_u32 s26, s24, s26
        s_mul_i32 s27, s26, 43
        s_lshr_b32 s27, s27, 8              ; ks
        s_mul_i32 s28, s27, 6
        s_sub_u32 s28, s26, s28             ; f
        s_mul_i32 s29, s25, 192
        s_lshl_b32 s28, s28, 5
        s_add_u32 s29, s29, s28
        s_cmp_ge_u32 s27, 16
        s_cbranch_scc1 {Lx}
        s_mul_i32 s30, s27, {36*1152}
        s_add_u32 s30, s30, s29
        """)
        for jj in range(8):
            a(f"s_add_u32 s31, s30, {((jj & 3) + 8 * (jj >> 2)) * 1152}")
            a(f"buffer_load_ushort v{8+jj}, v5, s[20:23], s31 offen")
        a(f"""
        s_branch {Lj}
        {Lx}:
        s_sub_u32 s30, s27, 16
        s_mul_i32 s30, s30, {288*1152}
        s_add_u32 s30, s30, s29
        """)
        for jj in range(8):
            a(f"s_add_u32 s31, s30, {(16 + 18 * (jj >> 1) + (jj & 1)) * 1152}")
            a(f"buffer_load_ushort v{8+jj}, v6, s[20:23], s31 offen")
        a(f"""
        {Lj}:
        s_lshl_b32 s30, s24, 10
        s_add_u32 s30, s30, {WS_WOF}
        s_waitcnt vmcnt(0)
        """)
        for i in range(4): a(f"v_lshl_or_b32 v{16+i}, v{9+2*i}, 16, v{8+2*i}")
        a(f"buffer_store_dwordx4 v[16:19], v7, s[4:7], s30 offen")
    a(f"s_branch {L('exit')}")
    a.label(L('t2'))
    a(f"""
    s_load_dwordx2 s[14:15], s[0:1], {KA_WQKV}
    s_sub_u32 s8, s2, {N_T1+N_T4}
    s_lshr_b32 s9, s8, 2                ; g
    s_and_b32 s8, s8, 3                 ; ft
    s_cmp_eq_u32 s9, 12
    s_cselect_b32 s11, s8, 0
    s_cmp_ge_u32 s11, 2
    s_cbranch_scc1 {L('exit')}
    v_and_b32 v3, 31, v2                ; m
    v_lshrrev_b32 v4, 5, v2             ; h
    s_cmp_ge_u32 s9, 13
    s_cbranch_scc1 {L('t2e')}
    s_cmp_ge_u32 s9, 8
    s_cbranch_scc1 {L('t2v')}
    v_lshrrev_b32 v5, 4, v3
    v_lshl_add_u32 v5, v5, 2, v3        ; m + (m>=16 ? 4 : 0)
    s_and_b32 s16, s9, 3
    s_lshl_b32 s16, s16, 2
    s_add_u32 s16, s16, s8
    s_mul_i32 s16, s16, 36
    s_lshr_b32 s17, s9, 2
    s_mul_i32 s17, s17, 576
    s_add_u32 s16, s16, s17
    s_branch {L('t2j')}
    {L('t2v')}:
    v_mov_b32 v5, v3
    s_sub_u32 s16, s9, 8
    s_lshl_b32 s16, s16, 7
    s_lshl_b32 s17, s8, 5
    s_add_u32 s16, s16, s17
    s_add_u32 s16, s16, 1152
    s_branch {L('t2j')}
    {L('t2e')}:
    v_lshrrev_b32 v5, 2, v3
    v_mul_u32_u24 v5, 36, v5
    v_and_b32 v6, 3, v3
    v_add_u32 v5, v5, v6
    s_and_b32 s16, s8, 1
    s_mul_i32 s16, s16, 288
    s_lshr_b32 s17, s8, 1
    s_mul_i32 s17, s17, 576
    s_add_u32 s16, s16, s17
    s_add_u32 s16, s16, 16
    {L('t2j')}:
    v_lshlrev_b32 v5, 1, v5
    v_mul_u32_u24 v6, {8*3456}, v4
    v_add_u32 v5, v5, v6                ; voffset
    s_lshl_b32 s16, s16, 1
    v_lshlrev_b32 v7, 4, v2
    v_mov_b32 v30, 0
    s_mul_i32 s17, s10, {16*3456}
    s_add_u32 s16, s16, s17
    s_mul_i32 s18, s9, {18*8192}
    s_lshl_b32 s19, s8, 10
    s_add_u32 s18, s18, s19
    s_lshl_b32 s19, s10, 12
    s_add_u32 s18, s18, s19
    s_add_u32 s18, s18, {WS_WF}
    s_waitcnt lgkmcnt(0)
    """)
    srd(a, 4, 12, WS_BYTES)
    srd(a, 20, 14, 576 * 3456)
    for n3 in range(3):
        for n in range(3):
            for jj in range(8):
                a(f"s_add_u32 s31, s16, {((3*n3+n) * 64 + jj) * 3456}")
                a(f"buffer_load_ushort v{32+8*n+jj}, v5, s[20:23], s31 offen")
        for n in range(3):
            a(f"s_waitcnt vmcnt({8*(2-n) + n})")
            for i in range(4): a(f"v_lshl_or_b32 v{16+i}, v{32+8*n+2*i+1}, 16, v{32+8*n+2*i}")
            a(f"s_add_u32 s30, s18, {(3*n3+n) * 4 * 4096}")
            a(f"buffer_store_dwordx4 v[16:19], v7, s[4:7], s30 offen")
            for jj in range(8):
                a(f"v_lshlrev_b32 v20, 16, v{32+8*n+jj}")
                a(f"v_add_f32 v30, v30, v20")
    a(f"""
    v_mov_b32 v31, v30
    s_nop 1
    v_permlane32_swap_b32 v31, v30
    s_nop 1
    v_add_f32 v30, v30, v31
    s_lshl_b32 s30, s10, 7
    v_lshlrev_b32 v21, 2, v3
    v_add_u32 v22, s30, v21
    ds_write_b32 v22, v30
    s_waitcnt lgkmcnt(0)
    s_barrier
    s_cmp_eq_u32 s10, 0
    s_cbranch_scc0 {L('exit')}
    ds_read_b32 v23, v21
    ds_read_b32 v24, v21 offset:128
    ds_read_b32 v25, v21 offset:256
    ds_read_b32 v26, v21 offset:384
    s_lshl_b32 s30, s9, 9
    s_lshl_b32 s31, s8, 7
    s_add_u32 s30, s30, s31
    s_add_u32 s30, s30, {WS_CS}
    s_waitcnt lgkmcnt(0)
    v_add_f32 v23, v23, v24
    v_add_f32 v25, v25, v26
    v_add_f32 v23, v23, v25
    s_mov_b32 exec_hi, 0
    buffer_store_dword v23, v21, s[4:7], s30 offen
    s_mov_b32 exec_hi, -1
    s_branch {L('exit')}
    """)
    a.label(L('t1'))
    a(f"""
    s_load_dwordx2 s[14:15], s[0:1], {KA_X}
    s_lshl_b32 s8, s2, 5
    s_lshl_b32 s9, s10, 3
    s_add_u32 s8, s8, s9
    v_lshrrev_b32 v3, 3, v2
    v_and_b32 v4, 7, v2                 ; c8
    v_mul_u32_u24 v5, 1152, v3
    v_lshl_add_u32 v5, v4, 4, v5
    s_mul_i32 s16, s8, 1152
    s_waitcnt lgkmcnt(0)
    """)
    srd(a, 4, 12, WS_BYTES)
    srd(a, 20, 14, S * D * 2)
    for i in range(9): a(f"buffer_load_dwordx4 v[{8+4*i}:{11+4*i}], v5, s[20:23], s16 offen offset:{128*i}")
    a(f"""
    v_mov_b32 v44, 0
    v_mov_b32 v45, 0
    v_mul_u32_u24 v6, 48, v3
    v_lshl_add_u32 v6, v4, 3, v6        ; row*48 + c8*8
    s_mul_i32 s17, s8, 48
    v_mov_b32 v48, 0
    v_mov_b32 v49, 0
    v_cmp_gt_u32 vcc, 6, v4
    s_add_u32 s18, s17, {WS_GR}
    s_add_u32 s19, s17, {WS_GR + GR_LAYER}
    s_mov_b64 exec, vcc
    buffer_store_dwordx2 v[48:49], v6, s[4:7], s18 offen
    buffer_store_dwordx2 v[48:49], v6, s[4:7], s19 offen
    s_mov_b64 exec, -1
    """)
    for i in range(9):
        a(f"s_waitcnt vmcnt({8 - i + 2})")
        for d in range(4):
            r = 8 + 4 * i + d
            a(f"v_lshlrev_b32 v46, 16, v{r}")
            a(f"v_and_b32 v47, 0xffff0000, v{r}")
            a(f"v_add_f32 v44, v44, v46")
            a(f"v_fmac_f32 v45, v46, v46")
            a(f"v_add_f32 v44, v44, v47")
            a(f"v_fmac_f32 v45, v47, v47")
    for dpp in ("quad_perm:[1,0,3,2]", "quad_perm:[2,3,0,1]", "row_half_mirror"):
        a("s_nop 1")
        a(f"v_add_f32_dpp v44, v44, v44 {dpp} row_mask:0xf bank_mask:0xf")
        a(f"v_add_f32_dpp v45, v45, v45 {dpp} row_mask:0xf bank_mask:0xf")
    a(f"""
    v_cmp_eq_u32 vcc, 0, v4
    s_add_u32 s17, s17, {WS_PS}
    s_nop 1
    v_cndmask_b32 v44, 0, v44, vcc
    v_cndmask_b32 v45, 0, v45, vcc
    v_cmp_gt_u32 vcc, 6, v4
    s_nop 4
    s_mov_b64 exec, vcc
    buffer_store_dwordx2 v[44:45], v6, s[4:7], s17 offen
    s_mov_b64 exec, -1
    s_branch {L('exit')}
    """)
    a.label(L('t4'))
    KR = 16
    VR = 36
    WR_ = 44
    a(f"""
    s_load_dwordx2 s[14:15], s[0:1], {KA_BK}
    s_load_dwordx2 s[16:17], s[0:1], {KA_BV}
    s_load_dwordx2 s[18:19], s[0:1], {KA_SHK}
    s_sub_u32 s8, s2, {N_T1}
    s_mul_i32 s9, s8, 57
    s_lshr_b32 s9, s9, 9                ; tb = i/9
    s_mul_i32 s11, s9, 9
    s_sub_u32 s8, s8, s11               ; db
    v_lshrrev_b32 v3, 3, v0             ; rp 0..31
    v_and_b32 v4, 7, v0                 ; c
    s_lshl_b32 s11, s8, 7
    v_lshlrev_b32 v5, 4, v4
    v_add_u32 v5, s11, v5
    v_lshlrev_b32 v6, 2, v5
    s_waitcnt lgkmcnt(0)
    """)
    srd(a, 4, 12, WS_BYTES)
    srd(a, 20, 14, S * D * 2)
    srd(a, 24, 16, S * D * 2)
    srd(a, 28, 18, 576 * 8)
    for i in range(4): a(f"buffer_load_dwordx4 v[{WR_+4*i}:{WR_+4*i+3}], v6, s[28:31], 0 offen offset:{16*i}")
    for ps in range(2):
        a(f"""
        s_lshl_b32 s33, s9, 7
        v_lshlrev_b32 v7, 1, v3
        v_add_u32 v7, {64*ps}, v7
        v_add_u32 v8, s33, v7
        """)
        for j in range(5):
            a(f"""
            v_subrev_u32 v9, {3 - j if j <= 3 else 0}, v8
            """ if j <= 3 else "v_add_u32 v9, 1, v8")
            a(f"""
            v_mul_u32_u24 v10, 1152, v9
            v_add_u32 v10, v10, v5
            v_cmp_gt_i32 vcc, 0, v9
            v_mov_b32 v11, 0x80000000
            s_nop 0
            v_cndmask_b32 v10, v10, v11, vcc
            buffer_load_dwordx4 v[{KR+4*j}:{KR+4*j+3}], v10, s[20:23], 0 offen
            """)
        a(f"""
        v_mul_u32_u24 v10, 1152, v8
        v_add_u32 v10, v10, v5
        buffer_load_dwordx4 v[{VR}:{VR+3}], v10, s[24:27], 0 offen
        buffer_load_dwordx4 v[{VR+4}:{VR+7}], v10, s[24:27], 0 offen offset:1152
        v_lshrrev_b32 v12, 1, v7            ; rp' (0..63)
        v_and_b32 v13, 7, v12
        v_sub_u32 v13, 7, v13
        v_and_b32 v12, 0x38, v12
        v_add_u32 v12, v12, v13
        v_lshlrev_b32 v12, 2, v12
        v_mul_u32_u24 v13, {8*260}, v4
        v_add_u32 v12, v12, v13
        s_waitcnt vmcnt(0)
        """)
        for i in range(8):
            def un(dst, src):
                if i & 1: a(f"v_and_b32 v{dst}, 0xffff0000, v{src}")
                else: a(f"v_lshlrev_b32 v{dst}, 16, v{src}")
            for j in range(5): un(60 + j, KR + 4 * j + (i >> 1))
            un(65, VR + (i >> 1)); un(66, VR + 4 + (i >> 1))
            a(f"v_lshlrev_b32 v67, 16, v{WR_+2*i}")
            a(f"v_and_b32 v68, 0xffff0000, v{WR_+2*i}")
            a(f"v_lshlrev_b32 v69, 16, v{WR_+2*i+1}")
            a(f"v_and_b32 v70, 0xffff0000, v{WR_+2*i+1}")
            a("v_mul_f32 v71, v60, v70\nv_mul_f32 v72, v61, v70")
            a("v_fmac_f32 v71, v61, v69\nv_fmac_f32 v72, v62, v69")
            a("v_fmac_f32 v71, v62, v68\nv_fmac_f32 v72, v63, v68")
            a("v_fmac_f32 v71, v63, v67\nv_fmac_f32 v72, v64, v67")
            a("v_mul_f32 v71, v71, v65\nv_mul_f32 v72, v72, v66")
            a("v_cvt_pk_bf16_f32 v73, v72, v71")
            a(f"ds_write_b32 v12, v73 offset:{260*i}")
    a(f"""
    s_waitcnt lgkmcnt(0)
    s_barrier
    v_lshlrev_b32 v3, 2, v2
    s_mul_i32 s33, s10, {16*260}
    v_add_u32 v4, s33, v3
    s_lshl_b32 s34, s8, 6
    s_lshl_b32 s35, s10, 4
    s_add_u32 s34, s34, s35
    s_lshl_b32 s34, s34, 12
    s_lshl_b32 s35, s9, 8
    s_add_u32 s34, s34, s35
    s_add_u32 s34, s34, {WS_UT}
    """)
    for i in range(16): a(f"ds_read_b32 v{8+i}, v4 offset:{260*i}")
    for i in range(16):
        a(f"s_waitcnt lgkmcnt({15 - i})")
        a(f"buffer_store_dword v{8+i}, v3, s[4:7], s34 offen")
        a(f"s_add_u32 s34, s34, 4096")
    a.label(L('exit'))
    a("s_endpgm")
    kernel_desc(a, name, 80)
```

```python
from asmlib import *
from layout import *
import struct

Q_LDS = 81920
NSLOT = 5; NSTAGE = 18
XR, WR = 0, 40960
SCR0 = XR + 4 * 8192
SCR1 = XR + 3 * 8192
NQWG = 16 * NGRP
def f2u(x): return struct.unpack('<I', struct.pack('<f', x))[0]

def emit_q_body(a, name, blocked_x, sid, prof=False, pidx=0):
    L = lambda x: f"L_{name}_{x}"
    pf = Prof(a, prof, pidx)
    pf.stamp_at(0)
    a(f"""
    s_load_dwordx2 s[12:13], s[0:1], {KA_WS}
    s_load_dwordx2 s[16:17], s[0:1], {KA_X}
    s_and_b32 s8, s{sid}, 7
    s_lshr_b32 s9, s{sid}, 3
    s_lshl_b32 s8, s8, 1
    s_and_b32 s11, s9, 1
    s_or_b32 s8, s8, s11
    s_lshr_b32 s9, s9, 1                ; group 0..13
    v_lshrrev_b32 v1, 6, v0
    v_and_b32 v2, 63, v0                ; lane
    v_readfirstlane_b32 s10, v1         ; wave
    v_lshlrev_b32 v7, 4, v2             ; lane*16
    s_cmp_ge_u32 s10, 4
    s_cbranch_scc0 {L('compute')}
    """)
    VX = 3
    a(f"""
    s_sub_u32 s28, s10, 4
    s_lshl_b32 s38, s28, 11
    s_mul_i32 s36, s9, {18*8192}
    s_add_u32 s36, s36, s38
    s_add_u32 s36, s36, {WS_WF}
    """)
    if blocked_x:
        a(f"""
        s_mul_i32 s32, s28, {BLK}
        s_lshl_b32 s30, s8, 11          ; 128 rows * 16B
        s_add_u32 s32, s32, s30
        s_add_u32 s32, s32, {WS_X2}
        s_mov_b32 s33, 1024
        s_mov_b32 s34, {4*BLK}
        v_mov_b32 v{VX}, v7
        s_waitcnt lgkmcnt(0)
        """)
        srd(a, 4, 12, WS_BYTES)
        XS = 4
    else:
        a(f"""
        v_lshrrev_b32 v5, 2, v2
        v_bfe_u32 v6, v2, 4, 2
        v_and_b32 v8, 3, v2
        v_xor_b32 v6, v6, v8
        s_lshl_b32 s30, s8, 7
        s_lshl_b32 s31, s28, 5
        s_add_u32 s30, s30, s31
        v_mul_u32_u24 v{VX}, 1152, v5
        v_lshl_add_u32 v{VX}, v6, 4, v{VX}
        s_mul_i32 s32, s30, 1152
        s_mov_b32 s33, {16*1152}
        s_mov_b32 s34, 64
        s_waitcnt lgkmcnt(0)
        """)
        srd(a, 4, 12, WS_BYTES)
        srd(a, 24, 16, S * D * 2)
        XS = 24
    issued = []
    def stage(st):
        slot = st % NSLOT
        a(f"s_add_u32 m0, s38, {XR + slot*8192}")
        a(f"s_add_u32 s40, s32, s33")
        a(f"buffer_load_dwordx4 v{VX}, s[{XS}:{XS+3}], s32 offen lds")
        a(f"s_add_u32 m0, s38, {XR + slot*8192 + 1024}")
        a(f"s_add_u32 s32, s32, s34")
        a(f"buffer_load_dwordx4 v{VX}, s[{XS}:{XS+3}], s40 offen lds")
        a(f"s_add_u32 m0, s38, {WR + slot*8192}")
        a(f"s_add_u32 s40, s36, 1024")
        a(f"buffer_load_dwordx4 v7, s[4:7], s36 offen lds")
        a(f"s_add_u32 m0, s38, {WR + slot*8192 + 1024}")
        a(f"s_add_u32 s36, s36, 8192")
        a(f"buffer_load_dwordx4 v7, s[4:7], s40 offen lds")
        issued.extend([st] * 4)
    def landed(st):
        last = max(i for i, x in enumerate(issued) if x == st)
        a(f"s_waitcnt vmcnt({len(issued) - 1 - last})")
    pf.stamp_at(1)
    for st in range(4): stage(st)
    pf.stamp_at(2)
    for st in range(NSTAGE):
        if st == 9: pf.stamp_at(3)
        if st + 1 < NSTAGE: landed(st + 1)
        a("s_barrier")
        if st + 4 < NSTAGE: stage(st + 4)
    a(f"s_branch {L('end')}")
    a.label(L('compute'))
    XF = [[8, 12], [16, 20]]
    WF = [[24, 28], [32, 36]]
    ACC = [[40, 56], [72, 88]]
    AX0, AX1, AW = 3, 4, 5
    RS = 6
    T = 104
    a(f"""
    s_and_b32 s28, s10, 1               ; th
    s_lshr_b32 s29, s10, 1              ; fh
    s_lshl_b32 s30, s8, 7
    s_lshl_b32 s31, s28, 6
    s_add_u32 s30, s30, s31
    s_mul_i32 s41, s30, 48
    s_add_u32 s41, s41, {WS_PS}
    v_mul_u32_u24 v{T}, 48, v2
    s_lshl_b32 s42, s9, 9
    s_lshl_b32 s43, s29, 8
    s_add_u32 s42, s42, s43
    s_add_u32 s42, s42, {WS_CS}
    v_and_b32 v{T+1}, 31, v2            ; m / n
    v_lshrrev_b32 v{T+2}, 5, v2         ; h
    s_waitcnt lgkmcnt(0)
    """)
    srd(a, 4, 12, WS_BYTES)
    a(f"""
    buffer_load_dwordx4 v[8:11], v{T}, s[4:7], s41 offen
    buffer_load_dwordx4 v[12:15], v{T}, s[4:7], s41 offen offset:16
    buffer_load_dwordx4 v[16:19], v{T}, s[4:7], s41 offen offset:32
    s_cmp_ge_u32 s9, 8
    s_cselect_b32 s33, 1, 0
    s_cmp_ge_u32 s9, 13
    s_cselect_b32 s33, 0, s33           ; s33 = 1: V tiles
    """)
    if blocked_x:
        a(f"""
        v_lshlrev_b32 v{AX0}, 4, v{T+1}
        v_lshl_add_u32 v{AX0}, v{T+2}, 11, v{AX0}     ; h*2048 + row*16
        s_lshl_b32 s30, s28, 10
        v_add_u32 v{AX0}, s30, v{AX0}
        v_add_u32 v{AX1}, 4096, v{AX0}
        """)
        TTOFF = 512
    else:
        a(f"""
        v_bfe_u32 v{T+3}, v2, 2, 2
        v_xor_b32 v{T+3}, v{T+2}, v{T+3}    ; pos0
        v_lshlrev_b32 v{AX0}, 6, v{T+1}
        v_lshl_add_u32 v{AX0}, v{T+3}, 4, v{AX0}
        s_lshl_b32 s30, s28, 12
        v_add_u32 v{AX0}, s30, v{AX0}
        v_xor_b32 v{AX1}, 32, v{AX0}
        """)
        TTOFF = 2048
    a(f"""
    s_lshl_b32 s30, s29, 11
    s_add_u32 s30, s30, {WR}
    v_add_u32 v{AW}, s30, v7
    v_lshlrev_b32 v{T+3}, 4, v{T+2}     ; h*16
    s_cmp_eq_u32 s33, 1
    s_cbranch_scc1 {L('vinit')}
    """)
    for f in range(2):
        for q in range(4):
            a(f"buffer_load_dwordx4 {vr(ACC[0][f]+4*q,4)}, v{T+3}, s[4:7], s42 offen offset:{f*128 + q*32}")
    def stats():
        a(f"""
        v_add_f32 v8, v8, v10
        v_add_f32 v9, v9, v11
        v_add_f32 v12, v12, v14
        v_add_f32 v13, v13, v15
        v_add_f32 v16, v16, v18
        v_add_f32 v17, v17, v19
        v_add_f32 v8, v8, v12
        v_add_f32 v9, v9, v13
        v_add_f32 v8, v8, v16
        v_add_f32 v9, v9, v17
        s_mov_b32 s43, {f2u(1.0/576):#x}
        v_mul_f32 v8, s43, v8              ; mean
        v_mul_f32 v9, s43, v9              ; E[x^2]
        v_fma_f32 v9, -v8, v8, v9
        v_max_f32 v9, 0, v9
        v_add_f32 v9, {f2u(1e-5):#x}, v9
        v_rsq_f32 v{RS}, v9
        """)
    AX = [AX0, AX1]
    def reads(k):
        st, kk = k >> 1, k & 1
        slot = st % NSLOT
        b = k & 1
        out = []
        for i in range(2):
            out.append(f"ds_read_b128 {vr(XF[b][i],4)}, v{AX[kk]} offset:{slot*8192 + i*TTOFF}")
            out.append(f"ds_read_b128 {vr(WF[b][i],4)}, v{AW} offset:{slot*8192 + kk*4096 + i*1024}")
        return out
    def mainloop(vtype):
        pf.stamp_at(1)
        a("s_barrier")
        pf.stamp_at(2)
        for r in reads(0): a(r)
        for k in range(2 * NSTAGE):
            b = k & 1
            if (k & 1) == 0 and k > 0: a("s_barrier")
            nxt = reads(k + 1) if k + 1 < 2 * NSTAGE else []
            a(f"s_waitcnt lgkmcnt(0)")
            mf = []
            for tt in range(2):
                for f in range(2):
                    A, B = (XF[b][tt], WF[b][f]) if vtype else (WF[b][f], XF[b][tt])
                    mf.append(f"v_mfma_f32_32x32x16_bf16 {vr(ACC[tt][f],16)}, {vr(A,4)}, {vr(B,4)}, {vr(ACC[tt][f],16)}")
            a(mf[0])
            for r in nxt[0:2]: a(r)
            a(mf[1])
            for r in nxt[2:4]: a(r)
            a(mf[2]); a(mf[3])
        pf.stamp_at(3)
    a("s_waitcnt vmcnt(8)")
    stats()
    a(f"""
    v_mov_b32 v{T+4}, v8
    v_mov_b32 v{T+5}, v8
    v_mov_b32 v{T+6}, v{RS}
    v_mov_b32 v{T+7}, v{RS}
    s_nop 1
    v_permlane32_swap_b32 v{T+4}, v{T+5}
    v_permlane32_swap_b32 v{T+6}, v{T+7}
    s_waitcnt vmcnt(0)
    """)
    for f in range(2):
        for i in range(16):
            a(f"v_mul_f32 v{ACC[1][f]+i}, -v{T+5}, v{ACC[0][f]+i}")
        for i in range(16):
            a(f"v_mul_f32 v{ACC[0][f]+i}, -v{T+4}, v{ACC[0][f]+i}")
    mainloop(False)
    a(f"""
    s_lshl_b32 s31, s8, 2
    s_lshl_b32 s30, s28, 1
    s_add_u32 s31, s31, s30
    s_cmp_ge_u32 s9, 4
    s_cselect_b32 s35, 1, 0
    s_cmp_eq_u32 s9, 13
    s_cselect_b32 s35, s29, s35
    s_mov_b32 s36, {f2u(QSCALE):#x}
    s_cmp_eq_u32 s35, 1
    s_cselect_b32 s36, 1.0, s36
    v_mul_f32 v{T+6}, s36, v{T+6}
    v_mul_f32 v{T+7}, s36, v{T+7}
    s_and_b32 s34, s9, 3
    s_lshl_b32 s37, s34, 2
    s_lshl_b32 s38, s29, 1
    s_add_u32 s37, s37, s38
    s_lshl_b32 s37, s37, 1
    s_mul_i32 s38, s37, {KV_HEAD}
    s_lshl_b32 s39, s37, 16
    s_add_u32 s39, s39, {WS_Q1}
    s_add_u32 s38, s38, {WS_KV}
    s_mov_b32 s40, {KV_HEAD}
    s_cmp_eq_u32 s35, 1
    s_cselect_b32 s38, s38, s39
    s_cselect_b32 s40, s40, 65536
    s_lshl_b32 s39, s31, 10
    s_add_u32 s38, s38, s39
    s_add_u32 s39, s38, s40
    s_lshl_b32 s43, s40, 1
    v_mov_b32 v{T+8}, v{T+6}
    v_mov_b32 v{T+9}, v{T+6}
    v_mov_b32 v{T+10}, v{T+7}
    v_mov_b32 v{T+11}, v{T+7}
    s_cmp_eq_u32 s9, 13
    s_cbranch_scc1 {L('exst')}
    """)
    def scale_pack(tt, f):
        for i in range(8):
            a(f"v_pk_mul_f32 {vr(ACC[tt][f]+2*i,2)}, {vr(ACC[tt][f]+2*i,2)}, {vr(T+8+2*tt,2)}")
        for i in range(8):
            a(f"v_cvt_pk_bf16_f32 v{ACC[tt][f]+i}, v{ACC[tt][f]+2*i}, v{ACC[tt][f]+2*i+1}")
    for f in range(2):
        for tt in range(2):
            scale_pack(tt, f)
            a(f"buffer_store_dwordx4 {vr(ACC[tt][f],4)}, v7, s[4:7], s38 offen offset:{tt*1024}")
            a(f"buffer_store_dwordx4 {vr(ACC[tt][f]+4,4)}, v7, s[4:7], s39 offen offset:{tt*1024}")
        if f == 0: a("s_add_u32 s38, s38, s43\ns_add_u32 s39, s39, s43")
    a(f"""
    s_branch {L('end')}
    {L('exst')}:
    """)
    for f in range(2):
        for tt in range(2): scale_pack(tt, f)
    a(f"""
    s_mov_b32 s40, {KV_HEAD}
    s_cmp_eq_u32 s35, 1
    s_cselect_b32 s40, s40, 8192
    v_mul_lo_u32 v{T+8}, v{T+2}, s40
    v_lshlrev_b32 v{T+8}, 1, v{T+8}
    s_cbranch_scc1 {L('exk')}
    v_lshl_add_u32 v{T+8}, v{T+1}, 2, v{T+8}
    s_lshl_b32 s38, s31, 7
    s_add_u32 s38, s38, {WS_Q2}
    s_mov_b32 s41, 128
    s_branch {L('exj')}
    {L('exk')}:
    v_lshl_add_u32 v{T+8}, v{T+1}, 4, v{T+8}
    s_lshr_b32 s38, s31, 2
    s_lshl_b32 s38, s38, 9
    s_and_b32 s39, s31, 3
    s_lshl_b32 s39, s39, 2
    s_add_u32 s38, s38, s39
    s_add_u32 s38, s38, {WS_KV + KV_K2}
    s_mov_b32 s41, 4
    {L('exj')}:
    """)
    for f in range(2):
        for j in range(4):
            for par in range(2):
                head = 2 * (8 * f + 2 * j) + par
                a(f"s_mul_i32 s42, s40, {head}")
                a(f"s_add_u32 s42, s42, s38")
                a(f"buffer_store_dword v{ACC[0][f]+2*j+par}, v{T+8}, s[4:7], s42 offen")
                a(f"s_add_u32 s42, s42, s41")
                a(f"buffer_store_dword v{ACC[1][f]+2*j+par}, v{T+8}, s[4:7], s42 offen")
    a(f"s_branch {L('end')}")
    a.label(L('vinit'))
    a(f"""
    v_lshlrev_b32 v{T+3}, 2, v{T+1}
    buffer_load_dword v{T+8}, v{T+3}, s[4:7], s42 offen
    buffer_load_dword v{T+9}, v{T+3}, s[4:7], s42 offen offset:128
    s_waitcnt vmcnt(2)
    """)
    stats()
    a(f"""
    s_lshl_b32 s30, s10, 8
    v_lshlrev_b32 v{T+4}, 2, v2
    v_add_u32 v{T+4}, s30, v{T+4}
    v_lshlrev_b32 v{T+5}, 4, v{T+2}
    v_add_u32 v{T+5}, s30, v{T+5}
    ds_write_b32 v{T+4}, v8 offset:{SCR0}
    s_waitcnt lgkmcnt(0)
    """)
    for tt in range(2):
        for q in range(4):
            a(f"ds_read_b128 v[{8+16*tt+4*q}:{11+16*tt+4*q}], v{T+5} offset:{SCR0 + tt*128 + q*32}")
    a("s_waitcnt vmcnt(0) lgkmcnt(0)")
    for tt in range(2):
        for f in range(2):
            for i in range(16):
                a(f"v_mul_f32 v{ACC[tt][f]+i}, -v{8+16*tt+i}, v{T+8+f}")
    mainloop(True)
    a(f"""
    ds_write_b32 v{T+4}, v{RS} offset:{SCR1}
    s_sub_u32 s34, s9, 8                ; V group
    s_lshl_b32 s37, s34, 2
    s_lshl_b32 s38, s29, 1
    s_add_u32 s37, s37, s38
    s_lshl_b32 s37, s37, 5
    s_waitcnt lgkmcnt(0)
    """)
    for tt in range(2):
        for q in range(4):
            a(f"ds_read_b128 v[{8+16*tt+4*q}:{11+16*tt+4*q}], v{T+5} offset:{SCR1 + tt*128 + q*32}")
    for f in range(2):
        a(f"""
        v_add_u32 v{T+6}, s37, v{T+1}
        v_add_u32 v{T+6}, {32*f}, v{T+6}
        v_mul_u32_u24 v{T+7}, 3641, v{T+6}
        v_lshrrev_b32 v{T+7}, 16, v{T+7}        ; head
        v_mul_u32_u24 v{T+8}, 18, v{T+7}
        v_sub_u32 v{T+8}, v{T+6}, v{T+8}        ; dim
        s_mov_b32 s40, {KV_HEAD}
        v_mul_lo_u32 v{T+7}, v{T+7}, s40
        v_lshl_add_u32 v{T+7}, v{T+8}, 4, v{T+7}
        v_mul_u32_u24 v{T+9}, 304, v{T+2}
        v_add_u32 v{T+10+f}, v{T+7}, v{T+9}
        v_cmp_gt_u32 vcc, 576, v{T+6}
        s_mov_b64 s[{44+4*f}:{45+4*f}], vcc
        v_cmp_eq_u32 vcc, 17, v{T+8}
        s_and_b64 s[{46+4*f}:{47+4*f}], vcc, s[{44+4*f}:{45+4*f}]
        """)
    a(f"""
    s_lshl_b32 s31, s8, 2
    s_lshl_b32 s30, s28, 1
    s_add_u32 s31, s31, s30
    s_mul_i32 s38, s31, 1216
    s_add_u32 s38, s38, {WS_KV + KV_V}
    v_mov_b32 v{T+12}, 0x3f803f80
    v_mov_b32 v{T+13}, 0x3f803f80
    v_mov_b32 v{T+14}, 0x3f803f80
    v_mov_b32 v{T+15}, 0x3f803f80
    s_waitcnt lgkmcnt(0)
    """)
    for tt in range(2):
        for f in range(2):
            for i in range(16):
                r = ACC[tt][f] + i
                a(f"v_mul_f32 v{r}, v{r}, v{8+16*tt+i}")
            for i in range(8):
                r = ACC[tt][f]
                a(f"v_cvt_pk_bf16_f32 v{r+i}, v{r+2*i}, v{r+2*i+1}")
            for half in range(2):
                off = (2 * tt + half) * 608
                a(f"s_mov_b64 exec, s[{44+4*f}:{45+4*f}]")
                a(f"buffer_store_dwordx4 {vr(ACC[tt][f]+4*half,4)}, v{T+10+f}, s[4:7], s38 offen offset:{off}")
                a(f"s_mov_b64 exec, s[{46+4*f}:{47+4*f}]")
                a(f"buffer_store_dwordx4 {vr(T+12,4)}, v{T+10+f}, s[4:7], s38 offen offset:{off+16}")
            a("s_mov_b64 exec, -1")
    a.label(L('end'))
    if prof:
        pf.stamp_at(4)
        a("s_waitcnt vmcnt(0)")
        pf.stamp_at(5)
        pf.dump(4, sid, 10)
```

```python
S = 2048; D = 576; H = 32; DH = 18
KV_HEAD = 151552
KV_K2 = 65536; KV_V = 73728
WS_KV = 0
WS_Q1 = 0x500000
WS_Q2 = 0x700000
WS_O  = 0x800000
WS_X2 = 0xB00000
WS_Y  = 0xE00000
WS_UT = 0x1100000
WS_PS = 0x1400000
WS_CS = 0x1480000
WS_GR = 0x1500000
GR_LAYER = 2048 * 48
YP = 8448
WS_WF = 0x1800000
WS_WOF = 0x1B00000
NGRP = 14
def wcol(g, ft, m):
    if g < 8:
        p = 4 * (g & 3) + ft
        return 576 * (g >> 2) + 36 * p + m + (4 if m >= 16 else 0)
    if g < 13:
        c = 1152 + 128 * (g - 8) + 32 * ft + m
        return c if c < 1728 else -1
    return 576 * (ft >> 1) + 36 * (8 * (ft & 1) + (m >> 2)) + 16 + (m & 3)
def worow(ks, kg, jj):
    if ks < 16:
        return 18 * (2 * ks + (kg >> 1)) + 4 * (kg & 1) + (jj & 3) + 8 * (jj >> 2)
    return 18 * (16 * (ks - 16) + 4 * kg + (jj >> 1)) + 16 + (jj & 1)
WS_BYTES = 0x10000000
BLK = 33024
QSCALE = (18.0 ** -0.5) * 1.4426950408889634
KA_X = 0; KA_WQKV = 8; KA_WO = 16; KA_BQ = 24; KA_BK = 32; KA_BV = 40; KA_SHK = 48; KA_SSMK = 56; KA_SSMD = 64; KA_OUT = 72; KA_DBG = 80; KA_WS = 88

WS_HOST = 0x1C00000
```

```python
import numpy as np
from layout import *

def bf16r(x):
    x = np.ascontiguousarray(x, dtype=np.float32)
    u = x.view(np.uint32)
    r = ((u + 0x7FFF + ((u >> 16) & 1)) >> 16).astype(np.uint32) << 16
    return r.view(np.float32)
def to_u16(x):
    return (np.ascontiguousarray(bf16r(x)).view(np.uint32) >> 16).astype(np.uint16)
def from_u16(u):
    return (u.astype(np.uint32) << 16).view(np.float32)

def main_dims(head):
    if head % 2 == 0: return list(range(16)), [16, 17]
    return list(range(2, 18)), [0, 1]
SLOT = [[4*h + (j & 3) + 8*(j >> 2) for j in range(8)] for h in range(2)]

def qk_frag(x, head):
    md, ed = main_dims(head)
    u = to_u16(x)
    img = np.zeros((64, 2, 32, 8), np.uint16)
    for h in range(2):
        for j in range(8):
            img[:, h, :, j] = u[:, md[SLOT[h][j]]].reshape(64, 32)
    ex = np.stack([u[:, ed[0]], u[:, ed[1]]], axis=1)
    return img, ex

def k2_img(e):
    return np.ascontiguousarray(e.reshape(16, 4, 32, 2).transpose(0, 2, 1, 3))

def v_img(v):
    u = to_u16(v)
    img = np.zeros((128, 2, 19, 8), np.uint16)
    ug = u.reshape(128, 16, 18)
    for h in range(2):
        for j in range(8):
            img[:, h, :18, j] = ug[:, SLOT[h][j], :]
    img[:, :, 18, :] = 0x3F80
    return img

def put(ws, off, arr):
    b = np.ascontiguousarray(arr).view(np.uint8).reshape(-1)
    ws[off:off + b.size] = b

def put_qkv(ws, qs, k, v):
    for h in range(H):
        i1, e1 = qk_frag(qs[h], h)
        put(ws, WS_Q1 + h * 65536, i1); put(ws, WS_Q2 + h * 8192, e1)
        i2, e2 = qk_frag(k[h], h)
        put(ws, WS_KV + h * KV_HEAD, i2); put(ws, WS_KV + h * KV_HEAD + KV_K2, k2_img(e2))
        put(ws, WS_KV + h * KV_HEAD + KV_V, v_img(v[h]))

def get_blocked(ws, off):
    u = ws[off:off + 72 * BLK].view(np.uint16).reshape(72, BLK // 2)[:, :S * 8].reshape(72, S, 8)
    return from_u16(np.ascontiguousarray(u.transpose(1, 0, 2)).reshape(S, 576))
def blocked_img(x):
    img = np.zeros((72, BLK // 2), np.uint16)
    img[:, :S * 8] = to_u16(x).reshape(S, 72, 8).transpose(1, 0, 2).reshape(72, S * 8)
    return img

def o_slot_to_feature():
    f = np.zeros(576, np.int64)
    for head in range(H):
        for h in range(2):
            for j in range(8):
                f[(2*head + h) * 8 + j] = 18*head + SLOT[h][j]
        g = 64 + head // 4
        for e in range(2):
            f[g*8 + 2*(head & 3) + e] = 18*head + 16 + e
    return f
def o_blocked_to_natural(o):
    f = o_slot_to_feature()
    nat = np.zeros_like(o)
    nat[:, f] = o
    return nat

def wf_img(w):
    u = to_u16(w)
    img = np.zeros((NGRP, 18, 2, 4, 64, 8), np.uint16)
    cs = np.zeros((NGRP, 128), np.float32)
    wsum = w.astype(np.float64).sum(0)
    for g in range(NGRP):
        for ft in range(4):
            cols = np.array([wcol(g, ft, m) for m in range(32)])
            if (cols < 0).any(): continue
            cs[g, 32*ft:32*ft+32] = wsum[cols]
            sub = u[:, cols].reshape(18, 2, 2, 8, 32)
            img[g, :, :, ft] = sub.transpose(0, 1, 2, 4, 3).reshape(18, 2, 64, 8)
    return img, cs

def wof_img(wo):
    u = to_u16(wo)
    img = np.zeros((6, 18, 6, 64, 8), np.uint16)
    for ks in range(18):
        for kg in range(4):
            for jj in range(8):
                r = worow(ks, kg, jj)
                img[:, ks, :, 16*kg:16*kg+16, jj] = u[r].reshape(6, 6, 16)
    return img
```

```python
class Asm:
    def __init__(self):
        self.lines = []
        self.uid = 0
    def __call__(self, s):
        for l in s.strip("\n").split("\n"):
            l = l.strip()
            if not l: continue
            if l.endswith(":") or l.startswith(".") or l.startswith(";"):
                self.lines.append(l)
            else:
                self.lines.append("    " + l)
    def label(self, name):
        self.lines.append(name + ":")
    def newlabel(self, base):
        self.uid += 1
        return f"L_{base}_{self.uid}"
    def text(self):
        return "\n".join(self.lines) + "\n"

def vr(base, n=1):
    return f"v{base}" if n == 1 else f"v[{base}:{base+n-1}]"
def ar(base, n=1):
    return f"a{base}" if n == 1 else f"a[{base}:{base+n-1}]"
def sr(base, n=1):
    return f"s{base}" if n == 1 else f"s[{base}:{base+n-1}]"

def kernel_head(a, name):
    a(f".text\n.globl {name}\n.p2align 8\n.type {name},@function\n{name}:")

def kernel_desc(a, name, vgpr, sgpr=102, accum=None, denorm=3):
    if accum is None: accum = (vgpr + 3) // 4 * 4
    a(f""".section .rodata,"a"
.p2align 6
.amdhsa_kernel {name}
.amdhsa_next_free_vgpr {vgpr}
.amdhsa_next_free_sgpr {sgpr}
.amdhsa_accum_offset {accum}
.amdhsa_group_segment_fixed_size 0
.amdhsa_kernarg_size 96
.amdhsa_user_sgpr_count 2
.amdhsa_user_sgpr_kernarg_segment_ptr 1
.amdhsa_system_sgpr_workgroup_id_x 1
.amdhsa_float_denorm_mode_32 {denorm}
.end_amdhsa_kernel
.text""")

def srd(a, d, ptr, nbytes):
    a(f"s_mov_b32 s{d}, s{ptr}")
    a(f"s_and_b32 s{d+1}, s{ptr+1}, 0xffff")
    a(f"s_mov_b32 s{d+2}, {nbytes:#x}")
    a(f"s_mov_b32 s{d+3}, 0x00020000")

PROF_OFF = 0x1700000
class Prof:
    def __init__(self, a, on, idx=0):
        self.a = a; self.on = on; self.n = 0; self.idx = idx
    def stamp(self):
        self.stamp_at(self.n)
    def stamp_at(self, i):
        if not self.on: return
        if i == 0: self.a("s_memrealtime s[94:95]")
        self.a(f"s_memtime s[{70+2*i}:{71+2*i}]")
        self.n = max(self.n, i + 1)
    def dump(self, srd, swg, swave, v=4):
        if not self.on: return
        a = self.a
        a("s_waitcnt lgkmcnt(0)")
        a("s_memrealtime s[68:69]\ns_waitcnt lgkmcnt(0)")
        a(f"v_mov_b32 v{v}, s94")
        for i in range(1, 7):
            if i < self.n:
                a(f"s_sub_u32 s66, s{70+2*i}, s70\nv_mov_b32 v{v+i}, s66")
            else: a(f"v_mov_b32 v{v+i}, 0")
        a(f"v_mov_b32 v{v+7}, s68")
        a(f"""
        s_lshl_b32 s66, s{swg}, 3
        s_add_u32 s66, s66, s{swave}
        s_lshl_b32 s66, s66, 5
        s_add_u32 s66, s66, {PROF_OFF + self.idx * 0x20000}
        v_mov_b32 v{v+8}, 0
        s_mov_b32 exec_hi, 0
        s_mov_b32 exec_lo, 1
        buffer_store_dwordx4 v[{v}:{v+3}], v{v+8}, s[{srd}:{srd+3}], s66 offen
        buffer_store_dwordx4 v[{v+4}:{v+7}], v{v+8}, s[{srd}:{srd+3}], s66 offen offset:16
        s_waitcnt vmcnt(0)
        s_mov_b64 exec, -1
        """)
```

```python
from asmlib import *
from layout import *

ATT_LDS = 155648

def emit_attn(a, name, prof=False, var="", pidx=0):
    kernel_head(a, name)
    Lend = f"L_{name}_end"
    Q1 = [4, 8]
    Q2 = [[12, 14], [16, 18]]
    K1, K2, V0, V1 = 20, 24, 28, 32
    P = 36
    O = [44, 60]
    Sb = [76, 92]
    AK1, AK2, AV = 108, 109, 110
    T0, T1, T2, T3, M = 112, 113, 114, 115, 116
    DB = "nodb" not in var
    K1b = [K1, 120] if DB else [K1, K1]
    V0b = [V0, 124] if DB else [V0, V0]
    V1b = [V1, 128] if DB else [V1, V1]
    K2b = [K2, 132]
    VL16 = 3
    AG = "ag" in var
    def fr(base, n):
        amap = {20: 0, 120: 4, 24: 8, 26: 10, 28: 12, 124: 16, 32: 20, 128: 24, 132: 28, 134: 30}
        return ar(amap[base], n) if AG else vr(base, n)
    pf = Prof(a, prof, pidx)
    pf.stamp_at(0)
    a(f"""
    s_cmp_ge_u32 s2, 256
    s_cbranch_scc1 {Lend}
    s_load_dwordx2 s[12:13], s[0:1], {KA_WS}
    s_lshr_b32 s8, s2, 6
    s_lshl_b32 s8, s8, 3
    s_and_b32 s9, s2, 7
    s_or_b32 s8, s8, s9                 ; head
    s_lshr_b32 s9, s2, 3
    s_and_b32 s9, s9, 7
    v_lshrrev_b32 v1, 6, v0
    v_and_b32 v2, 63, v0                ; lane
    v_readfirstlane_b32 s10, v1         ; wave
    v_lshlrev_b32 v{VL16}, 4, v2
    s_mul_i32 s14, s8, {KV_HEAD}
    s_and_b32 s23, s10, 3               ; qp
    s_lshr_b32 s28, s10, 2              ; kh
    s_lshl_b32 s11, s9, 3
    s_lshl_b32 s15, s23, 1
    s_add_u32 s11, s11, s15
    s_lshl_b32 s15, s10, 10             ; wave*1024
    s_add_u32 s18, s14, s15
    s_lshl_b32 s16, s8, 16
    s_lshl_b32 s17, s11, 10
    s_add_u32 s16, s16, s17
    s_add_u32 s16, s16, {WS_Q1}         ; Q1 offset
    s_lshl_b32 s17, s8, 13
    s_lshl_b32 s19, s11, 7
    s_add_u32 s17, s17, s19
    s_add_u32 s17, s17, {WS_Q2}         ; Q2 offset
    v_lshlrev_b32 v{T0}, 2, v2          ; lane*4
    v_mov_b32 v{Q2[0][0]}, 0
    v_mov_b32 v{Q2[1][0]}, 0
    s_waitcnt lgkmcnt(0)
    """)
    srd(a, 4, 12, WS_BYTES)
    a(f"""
    buffer_load_dwordx4 {vr(Q1[0],4)}, v{VL16}, s[4:7], s16 offen
    buffer_load_dwordx4 {vr(Q1[1],4)}, v{VL16}, s[4:7], s16 offen offset:1024
    s_mov_b32 exec_hi, 0
    buffer_load_dword v{Q2[0][0]}, v{T0}, s[4:7], s17 offen
    buffer_load_dword v{Q2[1][0]}, v{T0}, s[4:7], s17 offen offset:128
    s_mov_b32 exec_hi, -1
    """)
    k1b, k2b, vb = 0, KV_K2 // 1024, KV_V // 1024
    K1R = lambda r: k1b + 8 * r
    VA = lambda r: vb + 8 * r
    VB = lambda r: vb + 38 + 8 * r
    issued = []
    def dma(b):
        a(f"s_add_u32 m0, s15, {b*1024}")
        a(f"s_add_u32 s19, s18, {WS_KV + b*1024}")
        a(f"buffer_load_dwordx4 v{VL16}, s[4:7], s19 offen lds")
        issued.append(b)
    def arrive(blocks):
        last = max(issued.index(b) for b in blocks)
        a(f"s_waitcnt vmcnt({len(issued) - 1 - last})")
        a("s_barrier")
    for b in (K1R(0), K1R(4), k2b, VA(0), VB(0)): dma(b)
    a(f"""
    s_lshl_b32 s19, s28, 15             ; kh*32768
    v_add_u32 v{AK1}, s19, v{VL16}
    v_and_b32 v{T1}, 31, v2             ; m = lane&31
    s_lshl_b32 s19, s28, 12             ; kh*4096
    s_add_u32 s19, s19, {KV_K2}
    v_lshlrev_b32 v{AK2}, 4, v{T1}
    v_add_u32 v{AK2}, s19, v{AK2}
    v_subrev_u32 v{T2}, 20, v{T1}       ; m-20
    v_cmp_gt_u32 vcc, 20, v{T1}         ; m < 20
    v_lshrrev_b32 v{T3}, 5, v2          ; h
    s_mul_i32 s19, s28, 38912
    v_cndmask_b32 v{T2}, v{T2}, v{T1}, vcc
    v_cmp_eq_u32 vcc, 19, v{T1}
    v_mul_u32_u24 v{T3}, 304, v{T3}
    v_mov_b32 v{T0}, 16
    v_cndmask_b32 v{T2}, v{T2}, v{T0}, vcc
    s_add_u32 s19, s19, {KV_V}
    v_lshl_add_u32 v{AV}, v{T2}, 4, v{T3}
    v_add_u32 v{AV}, s19, v{AV}
    """)
    if "novz" not in var:
        a(f"""
        v_cmp_lt_u32 vcc, 18, v{T1}
        v_add_u32 v{T0}, 0x40000, v{AV}
        s_nop 1
        v_cndmask_b32 v{AV}, v{AV}, v{T0}, vcc
        """)
    for q in range(2):
        a(f"v_mov_b32 v{Q2[q][0]+1}, 0")
        a(f"v_mov_b32 v{Q2[q][1]}, 0")
        for i in range(16): a(f"v_mov_b32 v{O[q]+i}, 0")
    for i in range(4): a(f"v_accvgpr_write_b32 a{24+i}, 0" if AG else f"v_mov_b32 v{V1b[1]+i}, 0")
    for i in range(4): a(f"v_mov_b32 v{P+4+i}, 0")
    for i in range(4): a(f"v_mov_b32 v{Sb[1]+12+i}, 0")
    rq = []
    done = [0]
    def rd(tag, text):
        if "noread" in var: return
        a(text); rq.append(tag)
    def need(tag):
        if "noread" in var: return
        idx = len(rq) - 1 - rq[::-1].index(tag)
        if idx >= done[0]:
            a(f"s_waitcnt lgkmcnt({len(rq) - 1 - idx})")
            done[0] = idx + 1
    base = {'k1': 0, 'v': 0}
    def rdK1(kt): rd(('K1', kt), f"ds_read_b128 {fr(K1b[kt&1],4)}, v{AK1} offset:{(kt-base['k1'])*1024}")
    def rdK2(j):  rd(('K2', j), f"ds_read_b128 {fr(K2b[j&1],4)}, v{AK2} offset:{j*512}")
    def rdV0(kt): rd(('V0', kt), f"ds_read_b128 {fr(V0b[kt&1],4)}, v{AV} offset:{(2*(kt-base['v']))*608}")
    def rdV1(kt): rd(('V1', kt), f"ds_read_b128 {fr(V1b[kt&1],4)}, v{AV} offset:{(2*(kt-base['v'])+1)*608}")
    def Ma(kt, q): return f"v_mfma_f32_32x32x16_bf16 {vr(Sb[q],16)}, {fr(K1b[kt&1],4)}, {vr(Q1[q],4)}, 0"
    def Mb(kt, q): return f"v_mfma_f32_32x32x8bf16_1k {vr(Sb[q],16)}, {fr(K2b[(kt>>2)&1]+2*((kt>>1)&1),2)}, {vr(Q2[q][kt&1],2)}, {vr(Sb[q],16)}"
    def Md(q, kt): return f"v_mfma_f32_32x32x16_bf16 {vr(O[q],16)}, {fr(V1b[kt&1],4)}, {vr(P+4,4)}, {vr(O[q],16)}"
    def Mc(q, kt): return f"v_mfma_f32_32x32x16_bf16 {vr(O[q],16)}, {fr(V0b[kt&1],4)}, {vr(P,4)}, {vr(O[q],16)}"
    a("s_waitcnt vmcnt(0)\ns_barrier")
    a(f"""
    v_mov_b32 v{Q2[0][1]+1}, v{Q2[0][0]}
    v_mov_b32 v{Q2[1][1]+1}, v{Q2[1][0]}
    """)
    rdK1(0); rdK2(0); rdV0(0); rdK1(1); rdV1(0)
    for b in (VA(1), VB(1), K1R(1), K1R(5)): dma(b)
    need(('K2', 0))
    a(Ma(0, 0)); a(Mb(0, 0))
    need(('V1', 0))
    a("s_nop 11")
    pf.stamp_at(1)
    later = [VA(2), VB(2), K1R(2), K1R(6), VA(3), VB(3), K1R(3), K1R(7), VA(4), VB(4)]
    sync_at = {5: [VA(1), VB(1), K1R(1), K1R(5)], 12: later}
    NKT = 32
    def E1(r): a(f"v_exp_f32 v{r}, v{r}")
    def C(buf, g):
        if "nocvt" in var: return
        b = buf + 4 * g
        a(f"v_cvt_pk_bf16_f32 v{P+2*g}, v{b}, v{b+1}")
        a(f"v_cvt_pk_bf16_f32 v{P+2*g+1}, v{b+2}, v{b+3}")
    def MF(text):
        if "nomfma" not in var: a(text)
    for u in range(2 * NKT):
        kt, q = u >> 1, u & 1
        kn, qn = (u + 1) >> 1, (u + 1) & 1
        kp, qp_ = (u - 1) >> 1, (u - 1) & 1
        cur, oth = Sb[q], Sb[qn]
        last = (u == 2 * NKT - 1)
        reads = []
        if q == 0:
            if kt + 1 < NKT: reads.append(lambda k=kt + 1: rdV0(k))
            if (kt & 3) == 1 and (kt >> 2) + 1 < NKT // 4: reads.append(lambda j=(kt >> 2) + 1: rdK2(j))
        else:
            if kt + 2 < NKT: reads.append(lambda k=kt + 2: rdK1(k))
            if kt + 1 < NKT: reads.append(lambda k=kt + 1: rdV1(k))
        n0 = len(rq)
        for g in range(4):
            b = cur + 4 * g
            for i in range(4): E1(b + i)
            if g == 0: C(oth, 3)
            else: C(cur, g - 1)
            if g == 0:
                if not last: MF(Ma(kn, qn))
                if reads: reads.pop(0)()
            elif g == 1:
                if not last: MF(Mb(kn, qn))
            elif g == 2:
                MF(Md(qp_, kp) if u > 0 else Md(1, 1))
                if reads: reads.pop(0)()
            else:
                MF(Mc(q, kt))
                if "noread" not in var and n0 > done[0]:
                    a(f"s_waitcnt lgkmcnt({len(rq) - n0})"); done[0] = n0
                if q == 0 and kt < len(later): dma(later[kt])
                if qn == 0 and kn in sync_at and "nobar" not in var: arrive(sync_at[kn])
    a(f"""
    v_cvt_pk_bf16_f32 v{P+6}, v{Sb[1]+12}, v{Sb[1]+13}
    v_cvt_pk_bf16_f32 v{P+7}, v{Sb[1]+14}, v{Sb[1]+15}
    """)
    need(('V1', NKT - 1))
    a(f"""
    s_nop 1
    {Md(1, NKT - 1)}
    """)
    pf.stamp_at(2)
    Lq1 = f"L_{name}_q1"; Lx = f"L_{name}_x"
    XO = O[0]
    a(f"""
    s_barrier
    s_mul_i32 s19, s10, 3072
    v_add_u32 v{T0}, s19, v{VL16}
    s_xor_b32 s19, s10, 4
    s_mul_i32 s19, s19, 3072
    v_add_u32 v{T1}, s19, v{VL16}
    s_nop 7
    s_cmp_eq_u32 s28, 0
    s_cbranch_scc0 {Lq1}
    ds_write_b128 v{T0}, {vr(O[1],4)}
    ds_write_b128 v{T0}, {vr(O[1]+4,4)} offset:1024
    ds_write_b128 v{T0}, {vr(O[1]+8,4)} offset:2048
    s_branch {Lx}
    {Lq1}:
    ds_write_b128 v{T0}, {vr(O[0],4)}
    ds_write_b128 v{T0}, {vr(O[0]+4,4)} offset:1024
    ds_write_b128 v{T0}, {vr(O[0]+8,4)} offset:2048
    s_waitcnt lgkmcnt(0)
    """)
    for i in range(12): a(f"v_mov_b32 v{O[0]+i}, v{O[1]+i}")
    a(f"""
    {Lx}:
    s_waitcnt lgkmcnt(0)
    s_barrier
    ds_read_b128 {vr(Sb[0],4)}, v{T1}
    ds_read_b128 {vr(Sb[0]+4,4)}, v{T1} offset:1024
    ds_read_b128 {vr(Sb[0]+8,4)}, v{T1} offset:2048
    s_add_u32 s11, s11, s28
    s_waitcnt lgkmcnt(0)
    """)
    for i in range(11): a(f"v_add_f32 v{XO+i}, v{XO+i}, v{Sb[0]+i}")
    Lslow = f"L_{name}_slow"; Lfin = f"L_{name}_fin"
    a(f"""
    v_mov_b32 v{T1}, 0
    v_mov_b32 v{T0}, v{XO+10}
    s_mov_b32 s21, 0x1f800000           ; 2^-64
    s_mov_b32 s22, 0x5f800000           ; 2^64
    v_permlane32_swap_b32 v{T0}, v{XO+10}
    """)
    for i in range(10): a(f"v_fma_f32 v{T1}, v{XO+i}, 0, v{T1}")
    a(f"""
    v_cmp_nge_f32 s[24:25], v{T0}, s21
    v_cmp_nle_f32 s[26:27], v{T0}, s22
    v_cmp_u_f32 vcc, v{T1}, v{T1}
    s_nop 4
    s_or_b64 s[24:25], s[24:25], s[26:27]
    s_or_b64 s[24:25], s[24:25], vcc
    s_cmp_lg_u64 s[24:25], 0
    """)
    if "noslow" not in var: a(f"s_cbranch_scc1 {Lslow}")
    a.label(Lfin)
    a(f"""
    v_rcp_f32 v{T1}, v{T0}
    v_lshrrev_b32 v{T2}, 5, v2
    v_and_b32 v{T3}, 31, v2
    v_lshlrev_b32 v{T3}, 4, v{T3}       ; n*16
    v_mul_u32_u24 v{T2}, {BLK}, v{T2}
    v_add_u32 v{T2}, v{T2}, v{T3}
    """)
    for i in range(10): a(f"v_mul_f32 v{XO+i}, v{XO+i}, v{T1}")
    for i in range(5): a(f"v_cvt_pk_bf16_f32 v{P+i}, v{XO+2*i}, v{XO+2*i+1}")
    a(f"""
    s_mul_i32 s16, s8, {2*BLK}
    s_lshl_b32 s17, s11, 9
    s_add_u32 s16, s16, s17
    s_add_u32 s16, s16, {WS_O}
    s_lshr_b32 s19, s8, 2
    s_mul_i32 s19, s19, {BLK}
    s_add_u32 s19, s19, s17
    s_and_b32 s21, s8, 3
    s_lshl_b32 s21, s21, 2
    s_add_u32 s19, s19, s21
    s_add_u32 s19, s19, {WS_O + 64*BLK}
    buffer_store_dwordx4 {vr(P,4)}, v{T2}, s[4:7], s16 offen
    s_mov_b32 exec_hi, 0
    buffer_store_dword v{P+4}, v{T3}, s[4:7], s19 offen
    s_mov_b32 exec_hi, -1
    """)
    if prof:
        pf.stamp_at(3)
        a("s_waitcnt vmcnt(0)")
        pf.stamp_at(4)
        pf.dump(4, 2, 10)
    a.label(Lend)
    a("s_endpgm")
    a.label(Lslow)
    S0 = Sb[0]; OO = O[0]
    Lsq = f"L_{name}_sq"
    a(f"""
    s_cmp_eq_u32 s28, 0
    s_cbranch_scc1 {Lsq}
    """)
    for i in range(4): a(f"v_mov_b32 v{Q1[0]+i}, v{Q1[1]+i}")
    for i in range(4): a(f"v_mov_b32 v{Q2[0][0]+i}, v{Q2[1][0]+i}")
    a(f"""
    {Lsq}:
    s_lshl_b32 s19, s28, 12
    v_subrev_u32 v{AK2}, s19, v{AK2}
    s_mul_i32 s19, s28, 38912
    v_subrev_u32 v{AV}, s19, v{AV}
    v_mov_b32 v{M}, 0xff800000
    """)
    for i in range(16): a(f"v_mov_b32 v{OO+i}, 0")
    a(f"s_mov_b32 s20, 0\ns_add_u32 s29, s14, {WS_KV}")
    Ls = f"L_{name}_sloop"
    a.label(Ls)
    a(f"ds_read_b128 {fr(K2,4)}, v{AK2}")
    for i4 in range(4):
        a(f"""
        buffer_load_dwordx4 {vr(K1,4)}, v{VL16}, s[4:7], s29 offen offset:{i4*1024}
        ds_read_b128 {vr(V0,4)}, v{AV} offset:{2*i4*608}
        ds_read_b128 {vr(V1,4)}, v{AV} offset:{(2*i4+1)*608}
        s_waitcnt vmcnt(0) lgkmcnt(0)
        v_mfma_f32_32x32x16_bf16 {vr(S0,16)}, {vr(K1,4)}, {vr(Q1[0],4)}, 0
        v_mfma_f32_32x32x8bf16_1k {vr(S0,16)}, {vr(K2+2*(i4>>1),2)}, {vr(Q2[0][i4&1],2)}, {vr(S0,16)}
        s_nop 15
        s_nop 7
        v_max3_f32 v{T0}, v{S0}, v{S0+1}, v{S0+2}
        """)
        for i in range(3, 15, 2): a(f"v_max3_f32 v{T0}, v{T0}, v{S0+i}, v{S0+i+1}")
        a(f"""
        v_max_f32 v{T0}, v{T0}, v{S0+15}
        s_nop 1
        v_mov_b32 v{T1}, v{T0}
        s_nop 1
        v_permlane32_swap_b32 v{T1}, v{T0}
        s_nop 1
        v_max3_f32 v{T0}, v{T0}, v{T1}, v{M}
        v_sub_f32 v{T1}, v{M}, v{T0}
        v_exp_f32 v{T1}, v{T1}
        v_mov_b32 v{M}, v{T0}
        """)
        for i in range(16): a(f"v_sub_f32 v{S0+i}, v{S0+i}, v{M}")
        for i in range(16): a(f"v_exp_f32 v{S0+i}, v{S0+i}")
        for i in range(16): a(f"v_mul_f32 v{OO+i}, v{OO+i}, v{T1}")
        for i in range(8): a(f"v_cvt_pk_bf16_f32 v{P+i}, v{S0+2*i}, v{S0+2*i+1}")
        a(f"""
        s_nop 1
        v_mfma_f32_32x32x16_bf16 {vr(OO,16)}, {vr(V0,4)}, {vr(P,4)}, {vr(OO,16)}
        v_mfma_f32_32x32x16_bf16 {vr(OO,16)}, {vr(V1,4)}, {vr(P+4,4)}, {vr(OO,16)}
        s_nop 15
        s_nop 3
        """)
    a(f"""
    v_add_u32 v{AK2}, 512, v{AK2}
    v_add_u32 v{AV}, {4*1216}, v{AV}
    s_add_u32 s29, s29, 4096
    s_add_u32 s20, s20, 1
    s_cmp_lt_u32 s20, 16
    s_cbranch_scc1 {Ls}
    v_mov_b32 v{T0}, v{OO+10}
    s_nop 1
    v_permlane32_swap_b32 v{T0}, v{OO+10}
    s_nop 1
    s_branch {Lfin}
    """)
    kernel_desc(a, name, 136 + (32 if AG else 0), accum=136, denorm=(0 if "dn0" in var else 3))
```

```python
from asmlib import *
from layout import *
import struct
def f2u(x): return struct.unpack('<I', struct.pack('<f', x))[0]
WOL = 0
RSL = 110592
YL = RSL + 12288
OL = YL + 12288
C_LDS = OL + 12288
NCWG = 192

def emit_c_body(a, name, layer, sid, prof=False, pidx=0):
    L = lambda x: f"L_{name}_{x}"
    pf = Prof(a, prof, pidx)
    pf.stamp_at(0)
    a(f"""
    s_load_dwordx2 s[12:13], s[0:1], {KA_WS}
    s_load_dwordx2 s[16:17], s[0:1], {KA_X if layer == 0 else KA_OUT}
    s_and_b32 s8, s{sid}, 7
    s_lshr_b32 s9, s{sid}, 3            ; 0..23
    s_mul_i32 s11, s9, 43
    s_lshr_b32 s11, s11, 8              ; /6
    s_mul_i32 s14, s11, 6
    s_sub_u32 s9, s9, s14               ; member j
    s_lshl_b32 s11, s11, 3
    s_or_b32 s8, s8, s11
    v_lshrrev_b32 v1, 6, v0
    v_and_b32 v2, 63, v0                ; lane
    v_readfirstlane_b32 s10, v1         ; wave
    v_lshlrev_b32 v7, 4, v2             ; lane*16
    s_cmp_ge_u32 s10, 4
    s_cbranch_scc0 {L('compute')}
    """)
    a(f"""
    s_sub_u32 s28, s10, 4
    s_lshl_b32 s38, s28, 10
    s_mul_i32 s36, s9, {108*1024}
    s_add_u32 s36, s36, s38
    s_add_u32 s36, s36, {WS_WOF}
    s_lshl_b32 s30, s8, 6
    s_waitcnt lgkmcnt(0)
    """)
    srd(a, 4, 12, WS_BYTES)
    nis = [0]
    def wof(r):
        a(f"s_add_u32 m0, s38, {WOL + r*4096}")
        a(f"s_add_u32 s40, s36, {r*4096}")
        a(f"buffer_load_dwordx4 v7, s[4:7], s40 offen lds")
        nis[0] += 1
    order = []
    def tag(t): order.append(t)
    def wofs(lo, hi):
        for r in range(lo, hi):
            wof(r); tag(('w', r))
    def sync(need):
        last = max(order.index(t) for t in need)
        a(f"s_waitcnt vmcnt({len(order) - 1 - last})\ns_barrier")
    wofs(0, 9)
    if layer == 0:
        srd(a, 24, 16, S * D * 2)
        a(f"""
        s_mul_i32 s33, s30, 1152
        s_mul_i32 s34, s9, 192
        s_add_u32 s33, s33, s34
        """)
        for i in range(3):
            a(f"""
            s_lshl_b32 s34, s28, 6
            s_add_u32 s34, s34, {256*i}
            v_add_u32 v8, s34, v2               ; p
            v_mul_u32_u24 v9, 5462, v8
            v_lshrrev_b32 v9, 16, v9            ; token = p/12
            v_mul_u32_u24 v10, 12, v9
            v_sub_u32 v10, v8, v10              ; chunk
            v_mul_u32_u24 v9, 1152, v9
            v_lshl_add_u32 v9, v10, 4, v9
            s_add_u32 m0, s38, {RSL + i*4096}
            s_nop 0
            buffer_load_dwordx4 v9, s[24:27], s33 offen lds
            """)
            nis[0] += 1; tag(('r', i))
    else:
        a(f"""
        s_mul_i32 s33, s9, 12
        s_add_u32 s33, s33, s28
        s_mul_i32 s33, s33, {BLK}
        s_lshl_b32 s34, s30, 4
        s_add_u32 s33, s33, s34
        s_add_u32 s33, s33, {WS_X2}
        """)
        for i in range(3):
            a(f"s_add_u32 m0, s38, {RSL + i*4096}")
            a(f"s_add_u32 s40, s33, {4*i*BLK}")
            a(f"buffer_load_dwordx4 v7, s[4:7], s40 offen lds")
            nis[0] += 1; tag(('r', i))
    a(f"""
    v_lshrrev_b32 v8, 4, v2
    v_mul_u32_u24 v8, {YP}, v8
    v_and_b32 v9, 15, v2
    v_lshl_add_u32 v8, v9, 4, v8
    s_mul_i32 s34, s9, 48
    s_lshl_b32 s35, s28, 2
    s_add_u32 s34, s34, s35
    s_mul_i32 s34, s34, {YP}
    s_lshl_b32 s35, s30, 2
    s_add_u32 s34, s34, s35
    s_add_u32 s34, s34, {WS_Y}
    """)
    wofs(9, 12)
    nxt_r = 12
    for i in range(9):
        sync([('w', 3 * i + 2)])
        if i == 1:
            for k in range(3):
                a(f"s_add_u32 m0, s38, {YL + k*4096}")
                a(f"s_add_u32 s40, s34, {16*k*YP}")
                a(f"buffer_load_dwordx4 v8, s[4:7], s40 offen lds")
                tag(('y', k))
        if nxt_r < 27:
            wofs(nxt_r, nxt_r + 3); nxt_r += 3
    a(f"s_branch {L('end')}")
    a.label(L('compute'))
    OF = 8
    AF = [80, 104]
    ACC = 128
    RES = 152
    YV = 164
    T = 176
    n_, q_ = T, T + 1
    a(f"""
    v_and_b32 v{n_}, 15, v2
    v_lshrrev_b32 v{q_}, 4, v2
    s_lshl_b32 s30, s8, 6
    s_lshl_b32 s31, s10, 4
    s_add_u32 s30, s30, s31
    v_mul_u32_u24 v{T+2}, {BLK}, v{q_}
    v_lshl_add_u32 v{T+2}, v{n_}, 4, v{T+2}
    s_lshl_b32 s31, s30, 4
    s_add_u32 s31, s31, {WS_O}
    s_waitcnt lgkmcnt(0)
    """)
    srd(a, 4, 12, WS_BYTES)
    NPRE = 10
    def oload(ks):
        a(f"buffer_load_dwordx4 {vr(OF+4*ks,4)}, v{T+2}, s[4:7], s44 offen")
        a(f"s_add_u32 s44, s44, {4*BLK}")
    a("s_mov_b32 s44, s31")
    for ks in range(NPRE): oload(ks)
    for i in range(24): a(f"v_mov_b32 v{ACC+i}, 0")
    a(f"v_add_u32 v{T+6}, 55296, v7")
    if layer == 0:
        a(f"""
        s_lshl_b32 s31, s10, 4
        v_add_u32 v{T+3}, s31, v{n_}
        v_mul_u32_u24 v{T+3}, 192, v{T+3}
        v_lshl_add_u32 v{T+3}, v{q_}, 3, v{T+3}
        v_add_u32 v{T+3}, {RSL}, v{T+3}
        """)
    else:
        a(f"""
        v_lshrrev_b32 v{T+3}, 1, v{q_}
        v_lshlrev_b32 v{T+3}, 10, v{T+3}
        v_lshl_add_u32 v{T+3}, v{n_}, 4, v{T+3}
        v_and_b32 v{T+4}, 1, v{q_}
        v_lshl_add_u32 v{T+3}, v{T+4}, 3, v{T+3}
        s_lshl_b32 s31, s10, 8
        s_add_u32 s31, s31, {RSL}
        v_add_u32 v{T+3}, s31, v{T+3}
        """)
    a(f"""
    v_lshlrev_b32 v{T+5}, 9, v{q_}
    v_lshl_add_u32 v{T+5}, v{n_}, 2, v{T+5}
    s_lshl_b32 s31, s10, 6
    s_add_u32 s31, s31, {YL}
    v_add_u32 v{T+5}, s31, v{T+5}
    """)
    def rd(ks):
        base, off = (7, ks * 6144) if ks < 9 else (T + 6, (ks - 9) * 6144)
        return [f"ds_read_b128 {vr(AF[ks&1]+4*f,4)}, v{base} offset:{WOL + off + f*1024}" for f in range(6)]
    SYNC = {0, 2, 4, 6, 8, 10, 12, 14, 16}
    pf.stamp_at(1)
    a("s_barrier")
    pf.stamp_at(2)
    for r in rd(0): a(r)
    for ks in range(18):
        if ks + 1 in SYNC: a("s_barrier")
        nxt = rd(ks + 1) if ks + 1 < 18 else []
        if ks == 16:
            pre = []
            for f in range(6):
                pre.append(f"ds_read_b64 {vr(RES+2*f,2)}, v{T+3} offset:{(32 if layer == 0 else 2048)*f}")
            for f in range(6):
                pre.append(f"ds_read2st64_b32 {vr(YV+2*f,2)}, v{T+5} offset0:{8*f} offset1:{8*f+1}")
        if ks + NPRE < 18: oload(ks + NPRE)
        a(f"s_waitcnt vmcnt({min(NPRE, 17 - ks)}) lgkmcnt(0)")
        for f in range(6):
            a(f"v_mfma_f32_16x16x32_bf16 {vr(ACC+4*f,4)}, {vr(AF[ks&1]+4*f,4)}, {vr(OF+4*ks,4)}, {vr(ACC+4*f,4)}")
            if f < len(nxt): a(nxt[f])
            if ks == 17:
                a(pre[2*f]); a(pre[2*f+1])
    pf.stamp_at(3)
    X = 8
    S1, S2 = T + 8, T + 9
    a("s_waitcnt lgkmcnt(0)")
    for f in range(6):
        a(f"v_lshlrev_b32 v{X+4*f}, 16, v{RES+2*f}")
        a(f"v_and_b32 v{X+4*f+1}, 0xffff0000, v{RES+2*f}")
        a(f"v_lshlrev_b32 v{X+4*f+2}, 16, v{RES+2*f+1}")
        a(f"v_and_b32 v{X+4*f+3}, 0xffff0000, v{RES+2*f+1}")
    for i in range(12): a(f"v_pk_add_f32 {vr(X+2*i,2)}, {vr(X+2*i,2)}, {vr(ACC+2*i,2)}")
    def row_sums(base):
        P1, P2 = 32, 34
        a(f"v_pk_add_f32 {vr(P1,2)}, {vr(base,2)}, {vr(base+2,2)}")
        a(f"v_pk_mul_f32 {vr(P2,2)}, {vr(base,2)}, {vr(base,2)}")
        a(f"v_pk_fma_f32 {vr(P2,2)}, {vr(base+2,2)}, {vr(base+2,2)}, {vr(P2,2)}")
        for i in range(2, 12):
            a(f"v_pk_add_f32 {vr(P1,2)}, {vr(P1,2)}, {vr(base+2*i,2)}")
            a(f"v_pk_fma_f32 {vr(P2,2)}, {vr(base+2*i,2)}, {vr(base+2*i,2)}, {vr(P2,2)}")
        a(f"v_add_f32 v{S1}, v{P1}, v{P1+1}")
        a(f"v_add_f32 v{S2}, v{P2}, v{P2+1}")
        quad_reduce()
    def quad_reduce():
        for r in (S1, S2): a(f"v_mov_b32 v{r+2}, v{r}")
        a("s_nop 1")
        for r in (S1, S2): a(f"v_permlane32_swap_b32 v{r+2}, v{r}")
        a("s_nop 1")
        for r in (S1, S2): a(f"v_add_f32 v{r}, v{r}, v{r+2}")
        for r in (S1, S2): a(f"v_mov_b32 v{r+2}, v{r}")
        a("s_nop 1")
        for r in (S1, S2): a(f"v_permlane16_swap_b32 v{r+2}, v{r}")
        a("s_nop 1")
        for r in (S1, S2): a(f"v_add_f32 v{r}, v{r}, v{r+2}")
    row_sums(X)
    G = T + 12
    a(f"""
    v_or_b32 v{S2}, 0x80000000, v{S2}
    v_mul_u32_u24 v{G}, 48, v{n_}
    s_mul_i32 s35, s30, 48
    s_add_u32 s35, s35, {WS_GR + layer * GR_LAYER}
    s_lshl_b32 s36, s9, 3
    s_add_u32 s36, s36, s35
    s_mov_b64 exec, 0xffff
    buffer_store_dwordx2 v[{S1}:{S2}], v{G}, s[4:7], s36 offen sc0 sc1
    s_mov_b64 exec, -1
    v_lshl_add_u32 v{G+1}, v{q_}, 3, v{G}
    v_and_b32 v{G+2}, 1, v{q_}
    v_lshl_add_u32 v{G+2}, v{G+2}, 3, v{G}
    """)
    for i in range(12):
        a(f"v_lshlrev_b32 v{ACC+2*i}, 16, v{YV+i}")
        a(f"v_and_b32 v{ACC+2*i+1}, 0xffff0000, v{YV+i}")
    a(f"""
    s_mov_b32 s37, 0
    {L('poll')}:
    buffer_load_dwordx2 v[{G+4}:{G+5}], v{G+1}, s[4:7], s35 offen sc0 sc1
    buffer_load_dwordx2 v[{G+6}:{G+7}], v{G+2}, s[4:7], s35 offen offset:32 sc0 sc1
    s_add_u32 s37, s37, 1
    s_waitcnt vmcnt(0)
    v_and_b32 v{G+3}, v{G+5}, v{G+7}
    v_cmp_gt_i32 vcc, 0, v{G+3}
    s_nop 4
    s_cmp_eq_u64 vcc, -1
    s_cbranch_scc1 {L('got')}
    s_cmp_lt_u32 s37, 0x100000
    s_cbranch_scc1 {L('poll')}
    {L('got')}:
    """)
    pf.stamp_at(4)
    a(f"""
    v_and_b32 v{G+5}, 0x7fffffff, v{G+5}
    v_and_b32 v{G+7}, 0x7fffffff, v{G+7}
    v_cmp_gt_u32 vcc, 2, v{q_}
    s_nop 1
    v_cndmask_b32 v{G+6}, 0, v{G+6}, vcc
    v_cndmask_b32 v{G+7}, 0, v{G+7}, vcc
    v_add_f32 v{S1}, v{G+4}, v{G+6}
    v_add_f32 v{S2}, v{G+5}, v{G+7}
    """)
    quad_reduce()
    a(f"""
    s_mov_b32 s43, {f2u(1.0/576):#x}
    v_mul_f32 v{S1}, s43, v{S1}          ; mean
    v_mul_f32 v{S2}, s43, v{S2}
    v_fma_f32 v{S2}, -v{S1}, v{S1}, v{S2}
    v_max_f32 v{S2}, 0, v{S2}
    v_add_f32 v{S2}, {f2u(1e-5):#x}, v{S2}
    v_rsq_f32 v{S2}, v{S2}
    v_sub_f32 v{G+4}, 0, v{S1}
    v_mov_b32 v{G+6}, v{S2}
    v_mov_b32 v{G+7}, v{S2}
    v_mov_b32 v{G+5}, v{G+4}
    """)
    for i in range(12):
        a(f"v_pk_add_f32 {vr(32+2*i,2)}, {vr(X+2*i,2)}, {vr(G+4,2)}")
    for i in range(12):
        a(f"v_pk_mul_f32 {vr(32+2*i,2)}, {vr(32+2*i,2)}, {vr(G+6,2)}")
    for i in range(12):
        a(f"v_pk_fma_f32 {vr(X+2*i,2)}, {vr(32+2*i,2)}, {vr(ACC+2*i,2)}, {vr(X+2*i,2)}")
    for i in range(12):
        a(f"v_cvt_pk_bf16_f32 v{56+i}, v{X+2*i}, v{X+2*i+1}")
    if layer == 0:
        a(f"""
        v_lshrrev_b32 v{T+4}, 1, v{q_}
        v_mul_u32_u24 v{T+4}, {BLK}, v{T+4}
        v_lshl_add_u32 v{T+4}, v{n_}, 4, v{T+4}
        v_and_b32 v{T+3}, 1, v{q_}
        v_lshl_add_u32 v{T+4}, v{T+3}, 3, v{T+4}
        s_mul_i32 s33, s9, {12*BLK}
        s_lshl_b32 s34, s30, 4
        s_add_u32 s33, s33, s34
        s_add_u32 s33, s33, {WS_X2}
        """)
        for f in range(6):
            a(f"buffer_store_dwordx2 {vr(56+2*f,2)}, v{T+4}, s[4:7], s33 offen")
            if f < 5: a(f"s_add_u32 s33, s33, {2*BLK}")
        for i in range(12):
            a(f"v_lshlrev_b32 v{X+2*i}, 16, v{56+i}")
            a(f"v_and_b32 v{X+2*i+1}, 0xffff0000, v{56+i}")
        row_sums(X)
        a(f"""
        s_mul_i32 s35, s30, 48
        s_lshl_b32 s36, s9, 3
        s_add_u32 s35, s35, s36
        s_add_u32 s35, s35, {WS_PS}
        s_mov_b64 exec, 0xffff
        buffer_store_dwordx2 v[{S1}:{S2}], v{G}, s[4:7], s35 offen
        s_mov_b64 exec, -1
        """)
    else:
        srd(a, 24, 16, S * D * 2)
        a(f"""
        s_mul_i32 s33, s10, 3072
        s_add_u32 s33, s33, {OL}
        v_mul_u32_u24 v{T+3}, 192, v{n_}
        v_lshl_add_u32 v{T+3}, v{q_}, 3, v{T+3}
        v_add_u32 v{T+3}, s33, v{T+3}
        """)
        for f in range(6): a(f"ds_write_b64 v{T+3}, {vr(56+2*f,2)} offset:{32*f}")
        a(f"""
        v_add_u32 v{T+4}, s33, v7
        s_mul_i32 s34, s30, 1152
        s_mul_i32 s35, s9, 192
        s_add_u32 s34, s34, s35
        s_waitcnt lgkmcnt(0)
        """)
        for i in range(3):
            a(f"ds_read_b128 {vr(32+4*i,4)}, v{T+4} offset:{1024*i}")
            a(f"""
            v_add_u32 v{T+5}, {64*i}, v2
            v_mul_u32_u24 v{T+6}, 5462, v{T+5}
            v_lshrrev_b32 v{T+6}, 16, v{T+6}            ; token = p/12
            v_mul_u32_u24 v{T+7}, 12, v{T+6}
            v_sub_u32 v{T+7}, v{T+5}, v{T+7}
            v_mul_u32_u24 v{T+6}, 1152, v{T+6}
            v_lshl_add_u32 v{44+i}, v{T+7}, 4, v{T+6}
            """)
        for i in range(3):
            a(f"s_waitcnt lgkmcnt({2-i})")
            a(f"buffer_store_dwordx4 {vr(32+4*i,4)}, v{44+i}, s[24:27], s34 offen")
    a.label(L('end'))
    if prof:
        pf.stamp_at(5)
        a("s_waitcnt vmcnt(0)")
        pf.stamp_at(6)
        pf.dump(4, sid, 10)
```

```python
from asmlib import *
from layout import *
NCONV = 288
CONV_LDS = 65536 + 2 * 4608
HCOPY = 4160
HB = [0, 2 * HCOPY]
UB = [65536, 65536 + 4608]

def emit_conv_body(a, name, sid, prof=False, pidx=0, swg=2):
    L = lambda x: f"L_{name}_{x}"
    pf = Prof(a, prof, pidx)
    pf.stamp_at(0)
    a(f"""
    s_load_dwordx2 s[12:13], s[0:1], {KA_WS}
    s_load_dwordx2 s[14:15], s[0:1], {KA_SSMK}
    s_load_dwordx2 s[16:17], s[0:1], {KA_SSMD}
    v_lshrrev_b32 v1, 6, v0
    v_and_b32 v2, 63, v0
    v_readfirstlane_b32 s10, v1
    v_lshlrev_b32 v7, 4, v2             ; lane*16
    s_lshr_b32 s28, s10, 2
    s_and_b32 s29, s10, 3
    s_lshl_b32 s8, s{sid}, 1
    s_waitcnt lgkmcnt(0)
    s_lshl_b32 s9, s{sid}, 2
    s_add_u32 s16, s16, s9
    s_addc_u32 s17, s17, 0
    s_load_dword s33, s[16:17], 0
    """)
    srd(a, 4, 12, WS_BYTES)
    srd(a, 20, 14, 576 * 4096)
    a(f"""
    s_add_u32 s30, s8, s28
    s_lshl_b32 s30, s30, 12
    s_lshl_b32 s31, s29, 10
    s_add_u32 s30, s30, s31
    buffer_load_dwordx4 v[16:19], v7, s[20:23], s30 offen
    buffer_load_dword v20, v7, s[20:23], s30 offen offset:16
    s_add_u32 s34, s30, {WS_UT}
    s_mul_i32 s32, s28, 4608
    s_add_u32 s32, s32, s31
    s_add_u32 m0, s32, {UB[0] + 512}
    v_mov_b32 v8, 0
    buffer_load_dwordx4 v7, s[4:7], s34 offen lds
    v_mov_b32 v9, 0
    v_mov_b32 v10, 0
    v_mov_b32 v11, 0
    s_mul_i32 s37, s28, {HB[1]}
    s_add_u32 s32, s37, s31
    v_add_u32 v21, s32, v7
    s_cmp_eq_u32 s29, 0
    s_cbranch_scc0 {L('nz')}
    s_mul_i32 s32, s28, 4608
    s_add_u32 s32, s32, {UB[0]}
    v_add_u32 v12, s32, v7
    v_add_u32 v13, s37, v7
    s_mov_b32 exec_hi, 0
    ds_write_b128 v12, v[8:11]
    s_mov_b32 exec_lo, 3
    ds_write_b128 v13, v[8:11]
    ds_write_b128 v13, v[8:11] offset:{HCOPY}
    s_mov_b64 exec, -1
    {L('nz')}:
    s_waitcnt vmcnt(1)
    v_alignbit_b32 v24, v17, v16, 16
    v_alignbit_b32 v25, v18, v17, 16
    v_alignbit_b32 v26, v19, v18, 16
    v_alignbit_b32 v27, v20, v19, 16
    ds_write_b128 v21, v[16:19] offset:32
    ds_write_b128 v21, v[24:27] offset:{HCOPY + 32}
    s_cmp_eq_u32 s29, 0
    s_cbranch_scc0 {L('nz2')}
    v_lshlrev_b32 v22, 16, v16
    v_mov_b32 v23, s37
    s_waitcnt lgkmcnt(0)
    s_mov_b64 exec, 1
    ds_write_b32 v23, v22 offset:{HCOPY + 28}
    s_mov_b64 exec, -1
    {L('nz2')}:
    """)
    A, B, Y = 16, 48, 80
    AA, AB = 3, 4
    a(f"""
    v_and_b32 v12, 15, v2               ; b / a
    v_lshrrev_b32 v13, 5, v2            ; delta'
    v_bfe_u32 v14, v2, 4, 1             ; eh
    v_add_u32 v15, 1, v12
    v_lshrrev_b32 v15, 1, v15           ; (b+1)>>1
    v_lshlrev_b32 v{AA}, 2, v15
    v_lshl_add_u32 v{AA}, v13, 5, v{AA}
    v_lshl_add_u32 v{AA}, v14, 4, v{AA}
    v_and_b32 v15, 1, v12
    v_sub_u32 v15, 1, v15
    v_mul_u32_u24 v15, {HCOPY}, v15
    v_add_u32 v{AA}, v{AA}, v15
    s_lshl_b32 s34, s29, 7              ; 32 * (4 cq)
    s_add_u32 s32, s37, s34
    v_add_u32 v{AA}, s32, v{AA}
    v_add_u32 v112, 1024, v{AA}
    v_add_u32 v113, 2048, v{AA}
    v_add_u32 v114, 3072, v{AA}
    v_sub_u32 v{AB}, v12, v13
    v_lshlrev_b32 v{AB}, 5, v{AB}
    v_lshl_add_u32 v{AB}, v14, 4, v{AB}
    s_mul_i32 s32, s28, 4608
    s_add_u32 s32, s32, {UB[0] + 512}
    s_sub_u32 s32, s32, s34
    v_add_u32 v{AB}, s32, v{AB}
    """)
    for i in range(32): a(f"v_mov_b32 v{Y+i}, 0")
    pf.stamp_at(1)
    a("s_waitcnt vmcnt(0) lgkmcnt(0)\ns_barrier")
    pf.stamp_at(2)
    for cls in range(2):
        AAk = [AA, 112, 113, 114]
        for d in range(8):
            o = (d & 1) * 128 + cls * 16
            a(f"ds_read2_b32 {vr(A+4*d,2)}, v{AAk[d>>1]} offset0:{o} offset1:{o+1}")
            a(f"ds_read2_b32 {vr(A+4*d+2,2)}, v{AAk[d>>1]} offset0:{o+2} offset1:{o+3}")
            a(f"ds_read_b128 {vr(B+4*d,4)}, v{AB} offset:{512*d}")
            if d == 4 - 1 and False: pass
        if cls == 0: a(f"v_subrev_u32 v{AB}, 64, v{AB}")
        for n in range(8):
            a(f"s_waitcnt lgkmcnt({min(15, 3*(7-n))})")
            for d in range(n + 1):
                a(f"v_mfma_f32_16x16x32_bf16 {vr(Y+4*n,4)}, {vr(A+4*d,4)}, {vr(B+4*(n-d),4)}, {vr(Y+4*n,4)}")
    pf.stamp_at(3)
    a(f"""
    s_barrier
    s_lshl_b32 s32, s10, 13
    v_add_u32 v12, s32, v7
    s_nop 7
    """)
    for n in range(8): a(f"ds_write_b128 v12, {vr(Y+4*n,4)} offset:{1024*n}")
    a(f"""
    s_waitcnt lgkmcnt(0)
    s_barrier
    s_lshl_b32 s32, s10, 10
    v_add_u32 v12, s32, v7
    """)
    for p in range(8):
        base, off = (12, p * 8192)
        a(f"ds_read_b128 {vr(A+4*p,4)}, v12 offset:{off}")
    a(f"""
    v_and_b32 v13, 15, v2
    v_lshrrev_b32 v14, 4, v2
    v_lshlrev_b32 v15, 5, v13
    v_lshlrev_b32 v5, 3, v14
    v_sub_u32 v15, v15, v5
    s_lshl_b32 s32, s10, 9
    s_add_u32 s32, s32, {UB[0] + 512 + 24}
    v_add_u32 v15, s32, v15
    ds_read_b64 v[48:49], v15
    ds_read_b64 v[50:51], v15 offset:4608
    v_lshlrev_b32 v6, 6, v13
    v_lshl_add_u32 v6, v14, 4, v6
    s_mul_i32 s34, s{sid}, {YP}
    s_lshl_b32 s32, s10, 10
    s_add_u32 s34, s34, s32
    s_add_u32 s34, s34, {WS_Y}
    s_lshl_b32 s35, s33, 16             ; D ch0
    s_and_b32 s36, s33, 0xffff0000      ; D ch1
    s_waitcnt lgkmcnt(0)
    """)
    for ch in range(2):
        o = A + 16 * ch
        for r in range(4):
            a(f"v_add_f32 v{o+r}, v{o+r}, v{o+4+r}")
            a(f"v_add_f32 v{o+8+r}, v{o+8+r}, v{o+12+r}")
            a(f"v_add_f32 v{o+r}, v{o+r}, v{o+8+r}")
        u0, u1 = 48 + 2 * ch, 49 + 2 * ch
        a(f"v_and_b32 v52, 0xffff0000, v{u1}\nv_lshlrev_b32 v53, 16, v{u1}\nv_and_b32 v54, 0xffff0000, v{u0}\nv_lshlrev_b32 v55, 16, v{u0}")
        for r in range(4):
            a(f"v_fma_f32 v{o+r}, v{52+r}, s{35+ch}, v{o+r}")
    for r in range(4):
        a(f"v_cvt_pk_bf16_f32 v{56+r}, v{A+r}, v{A+16+r}")
    a(f"buffer_store_dwordx4 v[56:59], v6, s[4:7], s34 offen")
    if prof:
        pf.stamp_at(4)
        a("s_waitcnt vmcnt(0)")
        pf.stamp_at(5)
        pf.dump(4, swg, 10)
```

```python
from asmlib import *
from layout import *
import struct
def f2u(x): return struct.unpack('<I', struct.pack('<f', x))[0]

N_T1, N_T4, N_T2, N_T3 = 32, 144, 50, 81
NPREP = N_T1 + N_T4 + N_T2 + N_T3
PREP_LDS = 576 * 80 + 2048

def emit_prep(a, name, prof=False, pidx=0):
    L = lambda x: f"L_{name}_{x}"
    kernel_head(a, name)
    pf = Prof(a, prof, pidx)
    pf.stamp_at(0)
    a(f"""
    s_cmp_ge_u32 s2, {NPREP}
    s_cbranch_scc1 {L('exit2')}
    s_load_dwordx2 s[12:13], s[0:1], {KA_WS}
    v_lshrrev_b32 v1, 6, v0
    v_and_b32 v2, 63, v0
    v_readfirstlane_b32 s10, v1
    s_cmp_lt_u32 s2, {N_T1}
    s_cbranch_scc1 {L('t1')}
    s_cmp_lt_u32 s2, {N_T1+N_T4}
    s_cbranch_scc1 {L('t4')}
    s_cmp_lt_u32 s2, {N_T1+N_T4+N_T2}
    s_cbranch_scc1 {L('t2')}
    """)
    a(f"""
    s_load_dwordx2 s[14:15], s[0:1], {KA_WO}
    s_sub_u32 s8, s2, {N_T1+N_T4+N_T2}
    s_lshl_b32 s8, s8, 3
    s_add_u32 s8, s8, s10               ; fragment
    v_and_b32 v3, 15, v2                ; m
    v_lshrrev_b32 v4, 4, v2             ; kg
    v_lshrrev_b32 v5, 1, v4
    v_mul_u32_u24 v5, 18, v5
    v_and_b32 v6, 1, v4
    v_lshl_add_u32 v5, v6, 2, v5
    v_mul_u32_u24 v5, 1152, v5
    v_lshl_add_u32 v5, v3, 1, v5
    v_mul_u32_u24 v6, {72*1152}, v4
    v_lshl_add_u32 v6, v3, 1, v6
    v_lshlrev_b32 v7, 4, v2
    s_waitcnt lgkmcnt(0)
    """)
    pf.stamp_at(1)
    srd(a, 4, 12, WS_BYTES)
    srd(a, 20, 14, 576 * 1152)
    for n in range(1):
        Lx = L(f't3x{n}'); Lj = L(f't3j{n}')
        a(f"""
        s_add_u32 s24, s8, {n}              ; F
        s_mul_i32 s25, s24, 607
        s_lshr_b32 s25, s25, 16             ; j = F/108
        s_mul_i32 s26, s25, 108
        s_sub_u32 s26, s24, s26
        s_mul_i32 s27, s26, 43
        s_lshr_b32 s27, s27, 8              ; ks
        s_mul_i32 s28, s27, 6
        s_sub_u32 s28, s26, s28             ; f
        s_mul_i32 s29, s25, 192
        s_lshl_b32 s28, s28, 5
        s_add_u32 s29, s29, s28
        s_cmp_ge_u32 s27, 16
        s_cbranch_scc1 {Lx}
        s_mul_i32 s30, s27, {36*1152}
        s_add_u32 s30, s30, s29
        """)
        for jj in range(8):
            a(f"s_add_u32 s31, s30, {((jj & 3) + 8 * (jj >> 2)) * 1152}")
            a(f"buffer_load_ushort v{8+jj}, v5, s[20:23], s31 offen")
        a(f"""
        s_branch {Lj}
        {Lx}:
        s_sub_u32 s30, s27, 16
        s_mul_i32 s30, s30, {288*1152}
        s_add_u32 s30, s30, s29
        """)
        for jj in range(8):
            a(f"s_add_u32 s31, s30, {(16 + 18 * (jj >> 1) + (jj & 1)) * 1152}")
            a(f"buffer_load_ushort v{8+jj}, v6, s[20:23], s31 offen")
        a(f"""
        {Lj}:
        s_lshl_b32 s30, s24, 10
        s_add_u32 s30, s30, {WS_WOF}
        """)
        pf.stamp_at(2)
        a("s_waitcnt vmcnt(0)")
        pf.stamp_at(3)
        for i in range(4): a(f"v_lshl_or_b32 v{16+i}, v{9+2*i}, 16, v{8+2*i}")
        a(f"buffer_store_dwordx4 v[16:19], v7, s[4:7], s30 offen")
    a(f"s_branch {L('exit')}")
    a.label(L('t2'))
    CSL = 576 * 80
    a(f"""
    s_load_dwordx2 s[14:15], s[0:1], {KA_WQKV}
    s_sub_u32 s8, s2, {N_T1+N_T4}
    s_cmp_ge_u32 s8, 32
    s_cselect_b32 s11, 1, 0             ; V tile
    s_cbranch_scc1 {L('t2v')}
    s_lshr_b32 s16, s8, 4               ; section
    s_and_b32 s17, s8, 15               ; pair
    s_mul_i32 s18, s17, 72
    s_mul_i32 s19, s16, 1152
    s_add_u32 s18, s18, s19
    s_lshl_b32 s9, s16, 2
    s_lshr_b32 s19, s17, 2
    s_add_u32 s9, s9, s19               ; group
    s_and_b32 s8, s17, 3
    s_mov_b32 s24, 40
    s_branch {L('t2j')}
    {L('t2v')}:
    s_sub_u32 s17, s8, 32               ; V tile 0..17
    s_lshl_b32 s18, s17, 6
    s_add_u32 s18, s18, 2304
    s_lshr_b32 s9, s17, 2
    s_add_u32 s9, s9, 8
    s_and_b32 s8, s17, 3
    s_mov_b32 s24, 32
    {L('t2j')}:
    s_waitcnt lgkmcnt(0)
    """)
    pf.stamp_at(1)
    srd(a, 4, 12, WS_BYTES)
    srd(a, 20, 14, 576 * 3456)
    for n in range(6):
        if n == 5: a(f"s_cmp_ge_u32 s10, 5\ns_cbranch_scc1 {L('t2d')}")
        a(f"""
        s_lshl_b32 s25, s10, 6
        s_add_u32 s25, s25, {512*n}
        v_add_u32 v3, s25, v2               ; p
        v_mul_u32_u24 v4, 13108, v3
        v_lshrrev_b32 v4, 16, v4            ; row
        v_mul_u32_u24 v5, 5, v4
        v_sub_u32 v5, v3, v5                ; chunk
        v_mul_u32_u24 v4, 3456, v4
        v_lshl_add_u32 v4, v5, 4, v4
        s_lshl_b32 m0, s25, 4
        s_nop 0
        buffer_load_dwordx4 v4, s[20:23], s18 offen lds
        """)
    a.label(L('t2d'))
    a(f"""
    v_lshrrev_b32 v3, 5, v2             ; G>>1
    v_bfe_u32 v4, v2, 2, 2              ; i>>2
    v_lshl_add_u32 v3, v3, 3, v4
    v_mul_u32_u24 v3, 80, v3
    v_and_b32 v4, 3, v2
    v_lshl_add_u32 v5, v4, 3, v3        ; + (i&3)*8
    v_bfe_u32 v4, v2, 4, 1
    v_mul_lo_u32 v4, v4, s24
    v_add_u32 v5, v5, v4
    v_add_u32 v6, 32, v3
    s_mul_i32 s25, s10, {16*80}
    v_add_u32 v5, s25, v5
    v_add_u32 v6, s25, v6
    v_lshlrev_b32 v7, 4, v2
    s_mul_i32 s26, s9, {18*8192}
    s_lshl_b32 s27, s8, 10
    s_add_u32 s26, s26, s27
    s_lshl_b32 s27, s10, 12
    s_add_u32 s26, s26, s27
    s_add_u32 s26, s26, {WS_WF}
    s_lshl_b32 s28, s16, 1
    s_lshr_b32 s29, s17, 3
    s_add_u32 s28, s28, s29
    s_lshl_b32 s29, s28, 10
    s_and_b32 s30, s17, 7
    s_lshl_b32 s31, s30, 6
    s_add_u32 s29, s29, s31
    s_lshl_b32 s31, s10, 12
    s_add_u32 s29, s29, s31
    s_add_u32 s29, s29, {WS_WF + 13*18*8192}
    v_mov_b32 v30, 0
    v_mov_b32 v31, 0
    """)
    pf.stamp_at(2)
    a("s_waitcnt vmcnt(0)\ns_barrier")
    pf.stamp_at(3)
    for n in range(5):
        if n == 4: a(f"s_cmp_ge_u32 s10, 4\ns_cbranch_scc1 {L('t2r')}")
        o = n * 128 * 80
        a(f"ds_read_b64_tr_b16 v[{32+8*n}:{33+8*n}], v5 offset:{o}")
        a(f"ds_read_b64_tr_b16 v[{34+8*n}:{35+8*n}], v5 offset:{o + 320}")
        a(f"ds_read_b64_tr_b16 v[{36+8*n}:{37+8*n}], v6 offset:{o}")
        a(f"ds_read_b64_tr_b16 v[{38+8*n}:{39+8*n}], v6 offset:{o + 320}")
    a.label(L('t2r'))
    a("s_waitcnt lgkmcnt(0)")
    for n in range(5):
        if n == 4: a(f"s_cmp_ge_u32 s10, 4\ns_cbranch_scc1 {L('t2s')}")
        a(f"s_add_u32 s25, s26, {n * 8 * 4096}")
        a(f"buffer_store_dwordx4 v[{32+8*n}:{35+8*n}], v7, s[4:7], s25 offen")
        a(f"s_cmp_eq_u32 s11, 0\ns_cbranch_scc0 {L(f't2x{n}')}")
        a(f"s_add_u32 s25, s29, {n * 8 * 4096}")
        a("s_mov_b32 exec_lo, 15\ns_mov_b32 exec_hi, 15")
        a(f"buffer_store_dwordx4 v[{36+8*n}:{39+8*n}], v7, s[4:7], s25 offen")
        a("s_mov_b64 exec, -1")
        a.label(L(f't2x{n}'))
        for d in range(4):
            for (src, acc) in ((32+8*n+d, 30), (36+8*n+d, 31)):
                a(f"v_lshlrev_b32 v20, 16, v{src}")
                a(f"v_and_b32 v21, 0xffff0000, v{src}")
                a(f"v_add_f32 v{acc}, v{acc}, v20")
                a(f"v_add_f32 v{acc}, v{acc}, v21")
    a.label(L('t2s'))
    a(f"""
    v_mov_b32 v20, v30
    v_mov_b32 v21, v31
    s_nop 1
    v_permlane32_swap_b32 v20, v30
    v_permlane32_swap_b32 v21, v31
    s_nop 1
    v_add_f32 v30, v30, v20
    v_add_f32 v31, v31, v21
    s_lshl_b32 s30, s10, 8
    v_and_b32 v3, 31, v2
    v_lshlrev_b32 v22, 2, v3
    v_add_u32 v23, s30, v22
    ds_write_b32 v23, v30 offset:{CSL}
    ds_write_b32 v23, v31 offset:{CSL + 128}
    s_waitcnt lgkmcnt(0)
    s_barrier
    s_cmp_ge_u32 s10, 2
    s_cbranch_scc1 {L('exit')}
    s_lshl_b32 s30, s10, 7
    v_add_u32 v22, s30, v22
    """)
    for i in range(8): a(f"ds_read_b32 v{23+i}, v22 offset:{CSL + 256*i}")
    a(f"""
    s_lshl_b32 s30, s9, 9
    s_lshl_b32 s31, s8, 7
    s_add_u32 s30, s30, s31
    s_add_u32 s30, s30, {WS_CS}
    v_lshlrev_b32 v22, 2, v3
    s_waitcnt lgkmcnt(0)
    v_add_f32 v23, v23, v24
    v_add_f32 v25, v25, v26
    v_add_f32 v27, v27, v28
    v_add_f32 v29, v29, v30
    v_add_f32 v23, v23, v25
    v_add_f32 v27, v27, v29
    v_add_f32 v23, v23, v27
    s_cmp_eq_u32 s10, 0
    s_cbranch_scc0 {L('t2e')}
    s_mov_b32 exec_hi, 0
    buffer_store_dword v23, v22, s[4:7], s30 offen
    s_mov_b64 exec, -1
    s_branch {L('exit')}
    {L('t2e')}:
    s_cmp_eq_u32 s11, 1
    s_cbranch_scc1 {L('exit')}
    s_lshl_b32 s30, s28, 7
    s_and_b32 s31, s17, 7
    s_lshl_b32 s31, s31, 4
    s_add_u32 s30, s30, s31
    s_add_u32 s30, s30, {WS_CS + 13*512}
    s_mov_b64 exec, 15
    buffer_store_dword v23, v22, s[4:7], s30 offen
    s_mov_b64 exec, -1
    s_branch {L('exit')}
    """)
    a.label(L('t1'))
    a(f"""
    s_load_dwordx2 s[14:15], s[0:1], {KA_X}
    s_lshl_b32 s8, s2, 6
    s_lshl_b32 s9, s10, 3
    s_add_u32 s8, s8, s9
    v_lshrrev_b32 v3, 3, v2
    v_and_b32 v4, 7, v2                 ; c8
    v_mul_u32_u24 v5, 1152, v3
    v_lshl_add_u32 v5, v4, 4, v5
    s_mul_i32 s16, s8, 1152
    s_waitcnt lgkmcnt(0)
    """)
    pf.stamp_at(1)
    srd(a, 4, 12, WS_BYTES)
    srd(a, 20, 14, S * D * 2)
    for i in range(9): a(f"buffer_load_dwordx4 v[{8+4*i}:{11+4*i}], v5, s[20:23], s16 offen offset:{128*i}")
    a(f"""
    v_mov_b32 v44, 0
    v_mov_b32 v45, 0
    v_mul_u32_u24 v6, 48, v3
    v_lshl_add_u32 v6, v4, 3, v6        ; row*48 + c8*8
    s_mul_i32 s17, s8, 48
    v_mov_b32 v48, 0
    v_mov_b32 v49, 0
    v_cmp_gt_u32 vcc, 6, v4
    s_add_u32 s18, s17, {WS_GR}
    s_add_u32 s19, s17, {WS_GR + GR_LAYER}
    s_mov_b64 exec, vcc
    buffer_store_dwordx2 v[48:49], v6, s[4:7], s18 offen
    buffer_store_dwordx2 v[48:49], v6, s[4:7], s19 offen
    s_mov_b64 exec, -1
    """)
    pf.stamp_at(2)
    for i in range(9):
        a(f"s_waitcnt vmcnt({8 - i + 2})")
        if i == 0: pf.stamp_at(3)
        for d in range(4):
            r = 8 + 4 * i + d
            a(f"v_lshlrev_b32 v46, 16, v{r}")
            a(f"v_and_b32 v47, 0xffff0000, v{r}")
            a(f"v_add_f32 v44, v44, v46")
            a(f"v_fmac_f32 v45, v46, v46")
            a(f"v_add_f32 v44, v44, v47")
            a(f"v_fmac_f32 v45, v47, v47")
    for dpp in ("quad_perm:[1,0,3,2]", "quad_perm:[2,3,0,1]", "row_half_mirror"):
        a("s_nop 1")
        a(f"v_add_f32_dpp v44, v44, v44 {dpp} row_mask:0xf bank_mask:0xf")
        a(f"v_add_f32_dpp v45, v45, v45 {dpp} row_mask:0xf bank_mask:0xf")
    a(f"""
    v_cmp_eq_u32 vcc, 0, v4
    s_add_u32 s17, s17, {WS_PS}
    s_nop 1
    v_cndmask_b32 v44, 0, v44, vcc
    v_cndmask_b32 v45, 0, v45, vcc
    v_cmp_gt_u32 vcc, 6, v4
    s_nop 4
    s_mov_b64 exec, vcc
    buffer_store_dwordx2 v[44:45], v6, s[4:7], s17 offen
    s_mov_b64 exec, -1
    s_branch {L('exit')}
    """)
    a.label(L('t4'))
    KR = 16
    VR = 36
    WR_ = 44
    a(f"""
    s_load_dwordx2 s[14:15], s[0:1], {KA_BK}
    s_load_dwordx2 s[16:17], s[0:1], {KA_BV}
    s_load_dwordx2 s[18:19], s[0:1], {KA_SHK}
    s_sub_u32 s8, s2, {N_T1}
    s_mul_i32 s9, s8, 57
    s_lshr_b32 s9, s9, 9                ; tb = i/9
    s_mul_i32 s11, s9, 9
    s_sub_u32 s8, s8, s11               ; db
    v_lshrrev_b32 v3, 3, v0             ; rp 0..63
    v_and_b32 v4, 7, v0                 ; c
    s_lshl_b32 s11, s8, 7
    v_lshlrev_b32 v5, 4, v4
    v_add_u32 v5, s11, v5
    v_lshlrev_b32 v6, 2, v5
    s_waitcnt lgkmcnt(0)
    """)
    pf.stamp_at(1)
    srd(a, 4, 12, WS_BYTES)
    srd(a, 20, 14, S * D * 2)
    srd(a, 24, 16, S * D * 2)
    srd(a, 28, 18, 576 * 8)
    for i in range(4): a(f"buffer_load_dwordx4 v[{WR_+4*i}:{WR_+4*i+3}], v6, s[28:31], 0 offen offset:{16*i}")
    for ps in range(1):
        a(f"""
        s_lshl_b32 s33, s9, 7
        v_lshlrev_b32 v7, 1, v3
        v_add_u32 v7, {64*ps}, v7
        v_add_u32 v8, s33, v7
        """)
        for j in range(5):
            a(f"""
            v_subrev_u32 v9, {3 - j if j <= 3 else 0}, v8
            """ if j <= 3 else "v_add_u32 v9, 1, v8")
            a(f"""
            v_mul_u32_u24 v10, 1152, v9
            v_add_u32 v10, v10, v5
            v_cmp_gt_i32 vcc, 0, v9
            v_mov_b32 v11, 0x80000000
            s_nop 0
            v_cndmask_b32 v10, v10, v11, vcc
            buffer_load_dwordx4 v[{KR+4*j}:{KR+4*j+3}], v10, s[20:23], 0 offen
            """)
        a(f"""
        v_mul_u32_u24 v10, 1152, v8
        v_add_u32 v10, v10, v5
        buffer_load_dwordx4 v[{VR}:{VR+3}], v10, s[24:27], 0 offen
        buffer_load_dwordx4 v[{VR+4}:{VR+7}], v10, s[24:27], 0 offen offset:1152
        v_lshrrev_b32 v12, 1, v7            ; rp' (0..63)
        v_and_b32 v13, 7, v12
        v_sub_u32 v13, 7, v13
        v_and_b32 v12, 0x38, v12
        v_add_u32 v12, v12, v13
        v_lshlrev_b32 v12, 2, v12
        v_mul_u32_u24 v13, {8*260}, v4
        v_add_u32 v12, v12, v13
        """)
        pf.stamp_at(2)
        a("s_waitcnt vmcnt(0)")
        pf.stamp_at(3)
        for i in range(8):
            def un(dst, src):
                if i & 1: a(f"v_and_b32 v{dst}, 0xffff0000, v{src}")
                else: a(f"v_lshlrev_b32 v{dst}, 16, v{src}")
            for j in range(5): un(60 + j, KR + 4 * j + (i >> 1))
            un(65, VR + (i >> 1)); un(66, VR + 4 + (i >> 1))
            a(f"v_lshlrev_b32 v67, 16, v{WR_+2*i}")
            a(f"v_and_b32 v68, 0xffff0000, v{WR_+2*i}")
            a(f"v_lshlrev_b32 v69, 16, v{WR_+2*i+1}")
            a(f"v_and_b32 v70, 0xffff0000, v{WR_+2*i+1}")
            a("v_mul_f32 v71, v60, v70\nv_mul_f32 v72, v61, v70")
            a("v_fmac_f32 v71, v61, v69\nv_fmac_f32 v72, v62, v69")
            a("v_fmac_f32 v71, v62, v68\nv_fmac_f32 v72, v63, v68")
            a("v_fmac_f32 v71, v63, v67\nv_fmac_f32 v72, v64, v67")
            a("v_mul_f32 v71, v71, v65\nv_mul_f32 v72, v72, v66")
            a("v_cvt_pk_bf16_f32 v73, v72, v71")
            a(f"ds_write_b32 v12, v73 offset:{260*i}")
    a(f"""
    s_waitcnt lgkmcnt(0)
    s_barrier
    v_lshlrev_b32 v3, 2, v2
    s_mul_i32 s33, s10, {8*260}
    v_add_u32 v4, s33, v3
    s_lshl_b32 s34, s8, 6
    s_lshl_b32 s35, s10, 3
    s_add_u32 s34, s34, s35
    s_lshl_b32 s34, s34, 12
    s_lshl_b32 s35, s9, 8
    s_add_u32 s34, s34, s35
    s_add_u32 s34, s34, {WS_UT}
    """)
    for i in range(8): a(f"ds_read_b32 v{8+i}, v4 offset:{260*i}")
    for i in range(8):
        a(f"s_waitcnt lgkmcnt({7 - i})")
        a(f"buffer_store_dword v{8+i}, v3, s[4:7], s34 offen")
        a(f"s_add_u32 s34, s34, 4096")
    a.label(L('exit'))
    if prof:
        a("s_mov_b64 exec, -1\ns_waitcnt lgkmcnt(0)")
        srd(a, 4, 12, WS_BYTES)
        pf.stamp_at(4)
        a("s_waitcnt vmcnt(0)")
        pf.stamp_at(5)
        pf.dump(4, 2, 10)
    a.label(L('exit2'))
    a("s_endpgm")
    kernel_desc(a, name, 80)
```

```python
import sys
sys.path.insert(0, "work")
from asmlib import *
from layout import *
import k_prep, k_conv, k_q, k_attn, k_c

MAIN = "interleave_layers__softmax_full_mha__ssm_conv_h3__prompt_kernel"
HEADER = open("interleave_layers__softmax_full_mha__ssm_conv_h3__prompt.s.ref").read().split("; Override launch geometry")[0]

def build(prof=False, extra_empty=0, opts=None):
    opts = opts or {}
    launches = []
    a = Asm()
    a('.amdgcn_target "amdgcn-amd-amdhsa--gfx950"')
    k_prep.emit_prep(a, MAIN, prof=prof, pidx=0)
    launches.append((MAIN, k_prep.NPREP, 512, k_prep.PREP_LDS))
    n = "qkv1_conv_kernel"
    kernel_head(a, n)
    a(f"""
    s_cmp_ge_u32 s2, {k_q.NQWG + k_conv.NCONV}
    s_cbranch_scc1 L_{n}_exit
    s_cmp_ge_u32 s2, {k_q.NQWG}
    s_cbranch_scc1 L_{n}_conv
    """)
    k_q.emit_q_body(a, n, False, 2, prof=prof, pidx=1)
    a(f"L_{n}_exit:\ns_endpgm\nL_{n}_conv:\ns_sub_u32 s3, s2, {k_q.NQWG}")
    k_conv.emit_conv_body(a, n + "c", 3, prof=prof, pidx=1)
    a("s_endpgm")
    kernel_desc(a, n, 124)
    launches.append((n, k_q.NQWG + k_conv.NCONV, 512, k_q.Q_LDS))
    k_attn.emit_attn(a, "attn_kernel", prof=prof, pidx=2)
    A2 = "attn_kernel"
    if prof:
        A2 = "attn2_kernel"
        k_attn.emit_attn(a, A2, prof=prof, pidx=5)
    launches.append(("attn_kernel", 256, 512, k_attn.ATT_LDS))
    for layer, n in ((0, "proj1_kernel"), (1, "proj2_kernel")):
        kernel_head(a, n)
        a(f"s_cmp_ge_u32 s2, {k_c.NCWG}\ns_cbranch_scc1 L_{n}_exit")
        k_c.emit_c_body(a, n, layer, 2, prof=prof, pidx=3 + 3 * layer)
        a(f"L_{n}_exit:\ns_endpgm")
        kernel_desc(a, n, 200)
    n = "qkv2_kernel"
    kernel_head(a, n)
    a(f"s_cmp_ge_u32 s2, {k_q.NQWG}\ns_cbranch_scc1 L_{n}_exit")
    k_q.emit_q_body(a, n, True, 2, prof=prof, pidx=4)
    a(f"L_{n}_exit:\ns_endpgm")
    kernel_desc(a, n, 124)
    launches.append(("proj1_kernel", k_c.NCWG, 512, k_c.C_LDS))
    launches.append(("qkv2_kernel", k_q.NQWG, 512, 98304))
    launches.append((A2, 256, 512, k_attn.ATT_LDS))
    launches.append(("proj2_kernel", k_c.NCWG, 512, k_c.C_LDS))
    if extra_empty:
        kernel_head(a, "empty_kernel")
        a("s_endpgm")
        kernel_desc(a, "empty_kernel", 8)
        for i in range(extra_empty): launches.append(("empty_kernel", 256, 64, 0))
    head = HEADER + "; Launch list (one line per launch, in run order):\n"
    for (k, g, b, l) in launches:
        head += f"; @launch kernel={k} grid=({g},1,1) block=({b},1,1) lds={l}\n"
    return head + a.text(), launches

if __name__ == "__main__":
    text, launches = build()
    out = sys.argv[1] if len(sys.argv) > 1 else "interleave_layers__softmax_full_mha__ssm_conv_h3__prompt.s"
    open(out, "w").write(text)
    print("written", out, len(text), "bytes")
```
